```python
import torch

def _softmax(x, axis=-1):
    return torch.softmax(x, dim=axis)
def _gelu(x):
    return torch.nn.functional.gelu(x, approximate="tanh")
def _silu(x):
    return torch.nn.functional.silu(x)
def _sigmoid(x):
    return torch.sigmoid(x)
def _layernorm(x, axis=-1, eps=1e-5):
    m = x.mean(dim=axis, keepdim=True)
    v = x.var(dim=axis, keepdim=True, unbiased=False)
    return (x - m) / torch.sqrt(v + eps)
def _scatter_add(tgt, idx, src, axis=0):
    return tgt.clone().index_add_(axis, idx, src)
def _segment_sum(src, seg, n):
    out = torch.zeros((n,) + src.shape[1:], dtype=src.dtype)
    return out.index_add_(0, seg, src)
def _pad(x, pw):
    flat = tuple(v for pair in reversed(pw) for v in pair)
    return torch.nn.functional.pad(x, flat)

kernel_name = 'sequential_preLN__spectral_gfnet__mixer_token_mlp__prompt'

def setup_inputs():

    _w = (lambda a: (lambda t: t.to(torch.bfloat16) if t.is_floating_point() else t)(torch.as_tensor(a)))
    def _A_setup():
        B, S, D = 1, 2048, 448
        Df = D // 2 + 1
        return {
            "x": _w((lambda *s: torch.randn(*s, dtype=torch.bfloat16) * 0.05)(B, S, D)),
            "w_r": _w((lambda *s: torch.randn(*s, dtype=torch.bfloat16) * 0.4)(S, Df) * 0.02),
            "w_i": _w((lambda *s: torch.randn(*s, dtype=torch.bfloat16) * 0.4)(S, Df) * 0.02),
        }
    _A_in = _A_setup()

    def _B_setup():
        B, S, D, F = 1, 2048, 448, 1792
        return {
            "x": _w((lambda *s: torch.randn(*s, dtype=torch.bfloat16) * 0.05)(B, S, D)),
            "w1": _w((lambda *s: torch.randn(*s, dtype=torch.bfloat16) * 0.4)(S, F) * (S ** -0.5)),
            "b1": _w((lambda *s: torch.randn(*s, dtype=torch.bfloat16) * 3.2)(F) * 0.02),
            "w2": _w((lambda *s: torch.randn(*s, dtype=torch.bfloat16) * 0.2)(F, S) * (F ** -0.5)),
            "b2": _w((lambda *s: torch.randn(*s, dtype=torch.bfloat16) * 0.4)(S) * 0.02),
        }
    _B_in = _B_setup()

    return {
        "A_x": _A_in["x"],
        "A_w_r": _A_in["w_r"],
        "A_w_i": _A_in["w_i"],
        "B_x": _B_in["x"],
        "B_w1": _B_in["w1"],
        "B_b1": _B_in["b1"],
        "B_w2": _B_in["w2"],
        "B_b2": _B_in["b2"],
    }

def reference(A_x, A_w_r, A_w_i, B_x, B_w1, B_b1, B_w2, B_b2):
    def _A_ref(x, w_r, w_i):
        B, S, D = x.shape
        X = (lambda x, axes=(-2,-1): torch.fft.rfft2(x.float(), dim=axes))(x, axes=(-2, -1))
        W = w_r + 1j * w_i
        X = X * W
        y = (lambda x, s, axes=(-2,-1): torch.fft.irfft2(x, s=s, dim=axes).to(torch.bfloat16))(X, (S, D), axes=(-2, -1))
        return y

    def _B_ref(x, w1, b1, w2, b2):
        B, S, D = x.shape
        h = _layernorm(x, axis=-1)
        u = torch.einsum("bsd,sf->bdf", h, w1) + b1
        u = _gelu(u)
        y = torch.einsum("bdf,fs->bds", u, w2) + b2
        return (lambda x, *d: x.permute(*d))(y, 0, 2, 1)

    x = A_x
    h = x + _A_ref(_layernorm(x, axis=-1), A_w_r, A_w_i)
    h2 = h + _B_ref(_layernorm(h, axis=-1), B_w1, B_b1, B_w2, B_b2)
    return h2
```

```python
import re

REG_RE = re.compile(r"\b([vas])(?:(\d+)|\[(\d+):(\d+)\])")

def regs_of(opnd):
    out = set()
    for m in REG_RE.finditer(opnd):
        k = m.group(1)
        if m.group(2) is not None:
            out.add((k, int(m.group(2))))
        else:
            for i in range(int(m.group(3)), int(m.group(4)) + 1):
                out.add((k, i))
    if re.search(r"\bvcc\b", opnd): out |= {("vcc", 0)}
    if re.search(r"\bexec\b", opnd): out |= {("exec", 0)}
    if re.search(r"\bm0\b", opnd): out |= {("m0", 0)}
    return out

TRANS = ("v_exp_f32", "v_log_f32", "v_rcp_f32", "v_rsq_f32", "v_sqrt_f32", "v_sin_f32", "v_cos_f32")

def split_ops(s):
    ops = []; depth = 0; cur = ""
    for ch in s:
        if ch == "[": depth += 1
        if ch == "]": depth -= 1
        if ch == "," and depth == 0:
            ops.append(cur.strip()); cur = ""
        else:
            cur += ch
    if cur.strip(): ops.append(cur.strip())
    return ops

class Ins:
    def __init__(self, text):
        self.text = text
        t = text.split(";")[0].strip()
        self.is_label = t.endswith(":")
        self.is_dir = t.startswith(".")
        self.mn = t.split()[0] if t else ""
        rest = t[len(self.mn):].strip()
        ops = split_ops(rest)
        self.ops = ops
        mn = self.mn
        self.kind = "other"
        self.wr = set(); self.rd = set(); self.rdAB = set(); self.rdC = set(); self.stdata = set()
        self.passes = 0
        self.dpp = "dpp" in mn or "row_" in rest or "quad_perm" in rest
        if self.is_label or self.is_dir or not mn:
            self.kind = "none"; return
        R = [regs_of(o) for o in ops]
        if mn.startswith("v_mfma"):
            self.kind = "mfma"
            self.passes = 8 if "32x32" in mn else 4
            self.wr = R[0]; self.rdAB = R[1] | R[2]; self.rdC = R[3]; self.rd = self.rdAB | self.rdC
            self.dtext = ops[0]; self.ctext = ops[3].split()[0]
        elif mn.startswith("v_"):
            self.kind = "valu"
            if mn.startswith("v_permlane") and "swap" in mn:
                self.wr = R[0] | R[1]; self.rd = R[0] | R[1]
            elif mn.startswith("v_cmp"):
                self.wr = R[0]; self.rd = set().union(*R[1:])
            elif "_co_" in mn:
                self.wr = R[0] | R[1]; self.rd = set().union(*R[2:])
            else:
                self.wr = R[0]; self.rd = set().union(*R[1:]) if len(R) > 1 else set()
                if mn.startswith("v_fmac") or mn.startswith("v_pk_fmac") or self.dpp or "sdwa" in mn or mn.startswith("v_writelane"):
                    self.rd |= R[0]
                if mn.startswith("v_cndmask") and len(ops) == 3: self.rd |= {("vcc", 0)}
        elif mn.startswith("ds_"):
            self.kind = "ds"
            if mn.startswith("ds_read") or "permute" in mn or "swizzle" in mn:
                self.wr = R[0]; self.rd = set().union(*R[1:])
            else:
                self.rd = set().union(*R)
        elif mn.startswith("buffer_") or mn.startswith("global_"):
            self.kind = "vmem"
            islds = bool(re.search(r"\blds\b", rest))
            self.islds = islds
            if "load" in mn and not islds:
                self.wr = R[0]; self.rd = set().union(*R[1:])
                if "d16" in mn: self.rd |= R[0]
            else:
                self.rd = set().union(*R)
                if islds: self.rd |= {("m0", 0)}
                if "store" in mn and ("x3" in mn or "x4" in mn):
                    self.stdata = R[0] if mn.startswith("buffer_") else R[1]
        elif mn.startswith("s_"):
            self.kind = "salu"
            if mn in ("s_nop", "s_waitcnt", "s_barrier", "s_endpgm", "s_branch", "s_setprio", "s_sleep") or mn.startswith("s_cbranch") or mn.startswith("s_cmp"):
                self.rd = set().union(*R) if R else set()
            else:
                self.wr = R[0] if R else set(); self.rd = set().union(*R[1:]) if len(R) > 1 else set()
                if "saveexec" in mn: self.wr |= {("exec", 0)}
    def states(self):
        if self.kind == "none": return 0
        if self.mn == "s_nop": return int(self.ops[0], 0) + 1
        return 1

def vregs(s): return {r for r in s if r[0] in ("v", "a")}
def sregs(s): return {r for r in s if r[0] in ("s", "vcc")}

def need(prod, cons):
    n = 0
    pk, ck = prod.kind, cons.kind
    if pk == "valu":
        w = vregs(prod.wr); ws = sregs(prod.wr)
        if ck == "mfma" and w & cons.rd: n = max(n, 2)
        if ck == "valu":
            if cons.dpp and w & cons.rd: n = max(n, 2)
            if cons.mn.startswith("v_permlane") and w & cons.rd: n = max(n, 2)
            if cons.mn.startswith(("v_readlane", "v_readfirstlane")) and w & cons.rd: n = max(n, 1)
            if prod.mn.split("_e")[0] in TRANS or prod.mn in TRANS:
                if w & (cons.rd | cons.wr) : n = max(n, 1)
            if ("sdwa" in prod.mn and "dst_sel" in prod.text) and w & (cons.rd | cons.wr): n = max(n, 1)
            if ws & cons.rd:
                n = max(n, 4 if cons.mn.startswith(("v_readlane", "v_writelane")) else 2)
            if prod.mn.startswith("v_dot") and w & (cons.rd | cons.wr) and cons.mn != prod.mn: n = max(n, 3)
        if ck in ("vmem",) and ws & cons.rd: n = max(n, 5)
        if ck == "salu" and ws & cons.rd: n = max(n, 1)
        if ("exec", 0) in prod.wr:
            if ck == "mfma": n = max(n, 4)
            if ck == "valu" and cons.dpp: n = max(n, 5)
    if pk == "mfma":
        P = prod.passes
        d = prod.wr
        if ck == "mfma":
            if d & cons.rdAB: n = max(n, {4: 8, 8: 12}[P])
            if d & cons.rdC:
                if not (cons.ctext == prod.dtext and cons.passes == P): n = max(n, {4: 6, 8: 10}[P])
            if d & cons.wr and not (cons.ctext == prod.dtext): n = max(n, {4: 6, 8: 10}[P])
        elif ck in ("valu", "vmem", "ds"):
            if d & (cons.rd | cons.wr): n = max(n, {4: 8, 8: 12}[P])
        if ck == "valu" and prod.rdC & cons.wr: n = max(n, {4: 3, 8: 7}[P])
    if pk == "vmem" and prod.stdata:
        if prod.stdata & cons.wr: n = max(n, 2)
    if pk == "salu" and ("m0", 0) in prod.wr and ck == "vmem" and getattr(cons, "islds", False): n = max(n, 1)
    return n

class Asm:
    def __init__(self):
        self.lines = []
    def __call__(self, s):
        for l in s.split("\n"):
            l = l.strip()
            if l: self.lines.append(l)
    def finalize(self):
        out = []
        for l in self.lines:
            c = Ins(l)
            if c.kind != "none":
                dist = 0; req = 0
                for p in reversed(out):
                    if p.kind == "none": continue
                    r = need(p, c)
                    if r > dist: req = max(req, r - dist)
                    dist += p.states()
                    if dist >= 20: break
                while req > 0:
                    k = min(req, 16)
                    out.append(Ins(f"s_nop {k-1}")); req -= k
            out.append(c)
        return "\n".join(("" if (i.is_label or i.is_dir) else "  ") + i.text for i in out) + "\n"
```

```python
import sys, numpy as np
from asmlib import Asm

S, D, F = 2048, 448, 1792
WS_T, WS_TP, WS_H, WS_HT, WS_UT, WS_MAX, WS_SCALE = 0x0, 0x200000, 0x400000, 0x600000, 0x800000, 0xA00000, 0xA01000
OOB = 0x40000000

def kappa_to_k(kap):
    t, col = kap >> 4, kap & 15
    k = 2*(16*t + col) if t < 8 else 2*(16*(t-8) + col) + 1
    return k if k <= 224 else -1

def f16bits(x): return np.asarray(x, dtype=np.float64).astype(np.float16).view(np.uint16)

def table_A():
    out = np.zeros((15, 2, 7, 64, 8), np.float64)
    for t in range(15):
        for lane in range(64):
            g, col = lane >> 4, lane & 15
            k = kappa_to_k(16*t + col)
            if k < 0: continue
            for ks in range(7):
                d = 32*ks + 8*g + np.arange(8)
                ang = 2*np.pi*((d*k) % 448)/448
                out[t, 0, ks, lane] = np.cos(ang)/64
                out[t, 1, ks, lane] = -np.sin(ang)/64
    return f16bits(out).tobytes()

def table_B():
    out = np.zeros((4, 4, 64, 4, 2), np.float64)
    for mt in range(4):
        for ks in range(4):
            for lane in range(64):
                g, row = lane >> 4, lane & 15
                m = 16*mt + row
                n = 16*ks + 4*g + np.arange(4)
                ang = 2*np.pi*((m*n) % 64)/64
                out[mt, ks, lane, :, 0] = np.cos(ang)/8
                out[mt, ks, lane, :, 1] = np.sin(ang)/8
    return f16bits(out).tobytes()

def table_C():
    f28 = np.zeros((2, 2, 2, 64, 4, 2), np.float64)
    for ks in range(2):
        for dt in range(2):
            for lane in range(64):
                g, col = lane >> 4, lane & 15
                d2 = 16*dt + col
                if d2 >= 28: continue
                for r in range(4):
                    k2 = 16*ks + 4*g + r
                    if k2 >= 28: continue
                    ang = 2*np.pi*((k2*d2) % 28)/28
                    c, s = np.cos(ang)/4, np.sin(ang)/4
                    f28[ks, dt, 0, lane, r] = (c, -s)
                    f28[ks, dt, 1, lane, r] = (s, c)
    tw = np.zeros((2, 2, 64, 4), np.float32)
    for dt in range(2):
        for lane in range(64):
            g, col = lane >> 4, lane & 15
            d2 = 16*dt + col
            for r in range(4):
                k1 = 4*g + r
                ang = 2*np.pi*((k1*d2) % 448)/448
                tw[dt, 0, lane, r] = np.cos(ang); tw[dt, 1, lane, r] = np.sin(ang)
    f16 = np.zeros((2, 64, 4, 2), np.float64)
    for lane in range(64):
        g, col = lane >> 4, lane & 15
        for r in range(4):
            k1 = 4*g + r
            ang = 2*np.pi*((k1*col) % 16)/16
            c, s = np.cos(ang)/4, np.sin(ang)/4
            f16[0, lane, r] = (c, -s)
            f16[1, lane, r] = (s, c)
    return f16bits(f28).tobytes() + tw.tobytes() + f16bits(f16).tobytes()

def emit_table(name, data):
    q = np.frombuffer(data, dtype=np.uint64)
    L = [f".p2align 8", f".type {name},@object", f"{name}:"]
    for i in range(0, len(q), 8):
        L.append(".quad " + ",".join(("0x%x" % v) if v else "0" for v in q[i:i+8]))
    L.append(f".size {name}, {len(data)}")
    return "\n".join(L) + "\n"

def srd(A, d, lo, hi, nbytes, off=0):
    if off:
        A(f"s_add_u32 s{d}, s{lo}, {off:#x}")
        A(f"s_addc_u32 s{d+1}, s{hi}, 0")
        A(f"s_and_b32 s{d+1}, s{d+1}, 0xffff")
    else:
        A(f"s_mov_b32 s{d}, s{lo}")
        A(f"s_and_b32 s{d+1}, s{hi}, 0xffff")
    A(f"s_mov_b32 s{d+2}, {nbytes:#x}")
    A(f"s_mov_b32 s{d+3}, 0x20000")

def srd_tbl(A, d, name, nbytes):
    A(f"s_getpc_b64 s[{d}:{d+1}]")
    A(f"s_add_u32 s{d}, s{d}, {name}@rel32@lo+4")
    A(f"s_addc_u32 s{d+1}, s{d+1}, {name}@rel32@hi+12")
    A(f"s_and_b32 s{d+1}, s{d+1}, 0xffff")
    A(f"s_mov_b32 s{d+2}, {nbytes:#x}")
    A(f"s_mov_b32 s{d+3}, 0x20000")

def v2(r): return f"v[{r}:{r+1}]"
def v4(r): return f"v[{r}:{r+3}]"

def head(A, name, nwg):
    A(f".globl {name}\n.p2align 8\n.type {name},@function\n{name}:")
    A(f"s_cmp_ge_u32 s2, {nwg}\ns_cbranch_scc1 L_{name}_end")

def tail(A, name):
    A(f"L_{name}_end:\ns_endpgm")

def desc(name, vgpr, sgpr=102, accum=None):
    accum = accum or ((vgpr + 3)//4*4)
    return f""".p2align 6
.amdhsa_kernel {name}
  .amdhsa_next_free_vgpr {vgpr}
  .amdhsa_next_free_sgpr {sgpr}
  .amdhsa_accum_offset {accum}
  .amdhsa_group_segment_fixed_size 0
  .amdhsa_kernarg_size 88
  .amdhsa_user_sgpr_count 2
  .amdhsa_user_sgpr_kernarg_segment_ptr 1
  .amdhsa_system_sgpr_workgroup_id_x 1
  .amdhsa_float_denorm_mode_32 3
  .amdhsa_float_denorm_mode_16_64 3
.end_amdhsa_kernel
"""

def reduce_rows(A, regs, tmps, op="v_add_f32", full=False):
    for sh in (8, 4, 2, 1):
        for r in regs:
            A(f"{op}_dpp v{r}, v{r}, v{r} row_ror:{sh} row_mask:0xf bank_mask:0xf")
    for r, t in zip(regs, tmps): A(f"v_mov_b32 v{t}, v{r}")
    for r, t in zip(regs, tmps): A(f"v_permlane16_swap_b32 v{r}, v{t}")
    for r, t in zip(regs, tmps): A(f"{op} v{r}, v{r}, v{t}")
    if full:
        for r, t in zip(regs, tmps): A(f"v_mov_b32 v{t}, v{r}")
        for r, t in zip(regs, tmps): A(f"v_permlane32_swap_b32 v{r}, v{t}")
        for r, t in zip(regs, tmps): A(f"{op} v{r}, v{r}, v{t}")

def bf_round_scalar(A, dst, src):
    A(f"v_cvt_pk_bf16_f32 v{dst}, v{src}, v{src}")
    A(f"v_lshlrev_b32 v{dst}, 16, v{dst}")

def bf_round_arr(A, base, n, pk):
    for i in range(n//2):
        A(f"v_cvt_pk_bf16_f32 v{pk+i}, v{base+2*i}, v{base+2*i+1}")
    for i in range(n//2):
        A(f"v_lshlrev_b32 v{base+2*i}, 16, v{pk+i}")
        A(f"v_and_b32 v{base+2*i+1}, 0xffff0000, v{pk+i}")

def ln_stats_tail(A, rows):
    for R in rows: A(f"v_sub_f32 v{R['t0']}, v{R['mu']}, v{R['m']}")
    for R in rows: A(f"v_mul_f32 v{R['ss']}, s60, v{R['ss']}")
    for R in rows: A(f"v_fma_f32 v{R['ss']}, -v{R['t0']}, v{R['t0']}, v{R['ss']}")
    for R in rows: A(f"v_max_f32 v{R['ss']}, 0, v{R['ss']}")
    for R in rows: bf_round_scalar(A, R['ss'], R['ss'])
    for R in rows: A(f"v_add_f32 v{R['ss']}, s61, v{R['ss']}")
    for R in rows: bf_round_scalar(A, R['ss'], R['ss'])
    for R in rows: A(f"v_sqrt_f32 v{R['ss']}, v{R['ss']}")
    for R in rows: bf_round_scalar(A, R['ss'], R['ss'])
    for R in rows: A(f"v_rcp_f32 v{R['ss']}, v{R['ss']}")

LDS_A_PITCH = 480
def kernel_A():
    A = Asm(); name = "kA_kernel"
    head(A, name, 256)
    A("s_load_dwordx4 s[4:7], s[0:1], 0\ns_load_dwordx2 s[8:9], s[0:1], 16\ns_load_dwordx2 s[10:11], s[0:1], 80")
    A("s_and_b32 s36, s2, 63")
    A("s_lshr_b32 s37, s2, 6")
    A("v_lshrrev_b32 v2, 6, v0")
    A("v_and_b32 v1, 63, v0")
    A("v_readfirstlane_b32 s38, v2")
    srd_tbl(A, 16, "tblA", 15*2*7*1024)
    A("s_mov_b32 s60, 0x3b124925")
    A("s_mov_b32 s61, 0x3727c5ac")
    A("s_lshl_b32 s39, s37, 2\ns_add_u32 s39, s39, s38")
    A("v_and_b32 v3, 31, v1")
    A("v_lshrrev_b32 v4, 5, v1")
    A("v_mul_u32_u24 v5, 57344, v4")
    A("v_lshl_add_u32 v5, v3, 4, v5")
    A("v_cmp_gt_u32 vcc, 28, v3")
    A(f"v_mov_b32 v6, {OOB:#x}")
    A("v_cndmask_b32 v5, v6, v5, vcc")
    A("s_mov_b64 s[62:63], vcc")
    A("s_lshl_b32 s40, s38, 8\ns_add_u32 s40, s40, s36\ns_mul_i32 s40, s40, 896")
    A("s_add_u32 s41, s40, 114688")
    A("v_lshlrev_b32 v7, 4, v1")
    A("s_waitcnt lgkmcnt(0)")
    srd(A, 12, 4, 5, S*D*2)
    A("buffer_load_dwordx4 v[8:11], v5, s[12:15], s40 offen")
    A("buffer_load_dwordx4 v[12:15], v5, s[12:15], s40 offen offset:448")
    A("buffer_load_dwordx4 v[16:19], v5, s[12:15], s41 offen")
    A("buffer_load_dwordx4 v[20:23], v5, s[12:15], s41 offen offset:448")
    srd(A, 20, 10, 11, 0x200000, WS_T)
    srd(A, 24, 6, 7, S*225*2)
    srd(A, 28, 8, 9, S*225*2)
    srd(A, 32, 10, 11, 1024, WS_MAX)
    A("s_cmp_lt_u32 s37, 2\ns_cselect_b32 s64, 1.0, -1.0\ns_mov_b32 s65, s64")
    A("s_cmp_ge_u32 s38, 4\ns_cbranch_scc1 L_A_aux1")
    A("s_mul_i32 s42, s39, 14336")
    for f in range(14):
        A(f"buffer_load_dwordx4 {v4(64+4*f)}, v7, s[16:19], s42 offen offset:{(f%4)*1024}")
        if f % 4 == 3: A("s_add_u32 s42, s42, 4096")
    A("v_and_b32 v56, 15, v1")
    A("v_lshrrev_b32 v57, 4, v1")
    A("v_cvt_f32_u32 v58, v56")
    A("v_add_f32 v59, 16.0, v58") if False else A("v_add_f32 v59, 0x41800000, v58")
    A("v_lshlrev_b32 v60, 8, v57")
    A("v_add_u32 v60, s36, v60")
    A("v_cvt_f32_u32 v60, v60")
    A("v_mul_f32 v60, 0x3a000000, v60")
    for nt in range(2):
        for jp in range(4):
            for h in range(2):
                j = 2*jp + h
                off = (64*(j & 3) + 1024*(j >> 2))/2048.0
                offb = int(np.float32(off).view(np.uint32))
                A(f"v_add_f32 v61, {offb:#x}, v60")
                A(f"v_mul_f32 v61, v{58+nt}, v61")
                A(f"v_cos_f32 v{208+h}, v61")
                A(f"v_sin_f32 v{210+h}, v61")
            A(f"v_cvt_pk_f16_f32 v{192+4*nt+jp}, v208, v209")
            A(f"v_cvt_pk_f16_f32 v{200+4*nt+jp}, v210, v211")
    A("s_waitcnt vmcnt(14)")
    A("s_branch L_A_ln")
    A("L_A_aux1:")
    A("s_cmp_lg_u32 s38, 4\ns_cbranch_scc1 L_A_aux2")
    A("s_lshl_b32 s42, s2, 12")
    for m in range(4):
        A(f"buffer_load_dwordx4 {v4(64+4*m)}, v7, s[24:27], s42 offen offset:{m*1024}")
        A(f"buffer_load_dwordx4 {v4(80+4*m)}, v7, s[28:31], s42 offen offset:{m*1024}")
    A("s_waitcnt vmcnt(8)")
    A("s_branch L_A_ln")
    A("L_A_aux2:")
    A("s_waitcnt vmcnt(0)")
    A("L_A_ln:")
    X = [24, 40]; RAW = [8, 16]
    st = [dict(mu=212, m=214, ss=216, t0=218, acc=220), dict(mu=213, m=222, ss=224, t0=219, acc=226)]
    for p in range(2):
        for k in range(8):
            A(f"v_lshlrev_b32 v{X[p]+2*k}, 16, v{RAW[p]+k}")
            A(f"v_and_b32 v{X[p]+2*k+1}, 0xffff0000, v{RAW[p]+k}")
    for p in range(2):
        a = st[p]['acc']
        A(f"v_pk_add_f32 {v2(a)}, {v2(X[p])}, {v2(X[p]+2)}")
    for k in range(2, 8):
        for p in range(2):
            a = st[p]['acc']
            A(f"v_pk_add_f32 {v2(a)}, {v2(a)}, {v2(X[p]+2*k)}")
    for p in range(2): A(f"v_add_f32 v{st[p]['mu']}, v{st[p]['acc']}, v{st[p]['acc']+1}")
    reduce_rows(A, [s_['mu'] for s_ in st], [s_['t0'] for s_ in st])
    for p in range(2): A(f"v_mul_f32 v{st[p]['mu']}, s60, v{st[p]['mu']}")
    for p in range(2): bf_round_scalar(A, st[p]['m'], st[p]['mu'])
    for k in range(8):
        for p in range(2):
            A(f"v_pk_add_f32 {v2(X[p]+2*k)}, {v2(X[p]+2*k)}, {v2(st[p]['m'])} op_sel_hi:[1,0] neg_lo:[0,1] neg_hi:[0,1]")
    for p in range(2):
        A(f"v_pk_mul_f32 {v2(st[p]['acc'])}, {v2(X[p])}, {v2(X[p])}")
    for k in range(1, 8):
        for p in range(2):
            A(f"v_pk_fma_f32 {v2(st[p]['acc'])}, {v2(X[p]+2*k)}, {v2(X[p]+2*k)}, {v2(st[p]['acc'])}")
    for p in range(2): A(f"v_add_f32 v{st[p]['ss']}, v{st[p]['acc']}, v{st[p]['acc']+1}")
    for p in range(2): A(f"v_cndmask_b32 v{st[p]['ss']}, 0, v{st[p]['ss']}, s[62:63]")
    reduce_rows(A, [s_['ss'] for s_ in st], [s_['t0'] for s_ in st])
    ln_stats_tail(A, st)
    for p in range(2): bf_round_arr(A, X[p], 16, RAW[p])
    for k in range(8):
        for p in range(2):
            A(f"v_pk_mul_f32 {v2(X[p]+2*k)}, {v2(X[p]+2*k)}, {v2(st[p]['ss'])} op_sel_hi:[1,0]")
    for p in range(2): bf_round_arr(A, X[p], 16, RAW[p])
    for k in range(4):
        for p in range(2):
            A(f"v_pk_fma_f32 {v2(X[p]+2*k)}, {v2(X[p]+8+2*k)}, s[64:65], {v2(X[p]+2*k)}")
    for k in range(4):
        for p in range(2):
            A(f"v_cvt_pk_f16_f32 v{RAW[p]+k}, v{X[p]+2*k}, v{X[p]+2*k+1}")
    A(f"v_mul_u32_u24 v5, {LDS_A_PITCH}, v4")
    A("v_lshl_add_u32 v5, v3, 4, v5")
    A(f"s_mul_i32 s43, s38, {4*LDS_A_PITCH}")
    A("v_add_u32 v5, s43, v5")
    A("s_mov_b64 exec, s[62:63]")
    A(f"ds_write_b128 v5, {v4(RAW[0])}")
    A(f"ds_write_b128 v5, {v4(RAW[1])} offset:{2*LDS_A_PITCH}")
    A("s_mov_b64 exec, -1")
    A("s_waitcnt lgkmcnt(0)")
    A("s_barrier")
    A("s_cmp_ge_u32 s38, 4\ns_cbranch_scc1 L_A_aux3")
    A(f"s_cmp_ge_u32 s39, 15\ns_cbranch_scc1 L_{name}_end")
    A(f"v_mul_u32_u24 v5, {LDS_A_PITCH}, v56")
    A("v_lshl_add_u32 v5, v57, 4, v5")
    for ks in range(7):
        for mt in range(2):
            A(f"ds_read_b128 {v4(120+4*(2*ks+mt))}, v5 offset:{mt*16*LDS_A_PITCH + ks*64}")
    A("v_lshlrev_b32 v6, 16, v56")
    A("v_lshl_add_u32 v6, v57, 4, v6")
    A("s_lshl_b32 s44, s36, 10\ns_lshl_b32 s45, s39, 6\ns_add_u32 s44, s44, s45")
    A("s_add_u32 s45, s44, 0x100000")
    A("s_waitcnt vmcnt(0)")
    acc = {(0, 0): 176, (0, 1): 180, (1, 0): 184, (1, 1): 188}
    for ks in range(7):
        A(f"s_waitcnt lgkmcnt({12-2*ks})")
        for mt in range(2):
            for ri in range(2):
                a = acc[(ri, mt)]
                c = "0" if ks == 0 else v4(a)
                A(f"v_mfma_f32_16x16x32_f16 {v4(a)}, {v4(120+4*(2*ks+mt))}, {v4(64+4*(7*ri+ks))}, {c}")
    for mt in range(2):
        for h in range(2):
            r0 = acc[(0, mt)] + 2*h; i0 = acc[(1, mt)] + 2*h
            A(f"v_cvt_pk_f16_f32 v{8+2*mt+h}, v{r0}, v{r0+1}")
            A(f"v_cvt_pk_f16_f32 v{12+2*mt+h}, v{i0}, v{i0+1}")
            A(f"v_cvt_pk_f16_f32 v{16+2*mt+h}, -v{r0}, -v{r0+1}")
    for nt in range(2):
        A(f"v_mfma_f32_16x16x32_f16 {v4(24+8*nt)}, v[8:11], {v4(192+4*nt)}, 0")
        A(f"v_mfma_f32_16x16x32_f16 {v4(28+8*nt)}, v[12:15], {v4(192+4*nt)}, 0")
    for nt in range(2):
        A(f"v_mfma_f32_16x16x32_f16 {v4(24+8*nt)}, v[12:15], {v4(200+4*nt)}, {v4(24+8*nt)}")
        A(f"v_mfma_f32_16x16x32_f16 {v4(28+8*nt)}, v[16:19], {v4(200+4*nt)}, {v4(28+8*nt)}")
    for nt in range(2):
        for r in range(4):
            A(f"v_cvt_pk_f16_f32 v{40+4*nt+r}, v{24+8*nt+r}, v{28+8*nt+r}")
        A(f"buffer_store_dwordx4 {v4(40+4*nt)}, v6, s[20:23], s{44+nt} offen")
    A("s_endpgm")
    A("L_A_aux3:")
    A(f"s_cmp_lg_u32 s38, 4\ns_cbranch_scc1 L_{name}_end")
    A("s_waitcnt vmcnt(0)")
    A("s_mov_b32 s46, 0x7fff7fff")
    for k in range(32): A(f"v_and_b32 v{64+k}, s46, v{64+k}")
    for k in range(1, 32): A(f"v_pk_max_u16 v64, v64, v{64+k}")
    A("v_lshrrev_b32 v65, 16, v64\nv_and_b32 v64, 0xffff, v64\nv_max_u32 v64, v64, v65")
    reduce_rows(A, [64], [65], op="v_max_u32", full=True)
    A("s_lshl_b32 s47, s2, 2")
    A("v_mov_b32 v66, 0")
    A("s_mov_b64 exec, 1")
    A("buffer_store_dword v64, v66, s[32:35], s47 offen")
    tail(A, name)
    return A.finalize(), desc(name, 228)

def kernel_B():
    A = Asm(); name = "kB_kernel"
    head(A, name, 256)
    A("s_load_dwordx4 s[4:7], s[0:1], 8\ns_load_dwordx2 s[10:11], s[0:1], 80")
    A("s_and_b32 s36, s2, 31")
    A("s_lshr_b32 s37, s2, 5")
    A("v_lshrrev_b32 v2, 6, v0")
    A("v_and_b32 v1, 63, v0")
    A("v_readfirstlane_b32 s38, v2")
    srd_tbl(A, 16, "tblB", 16384)
    A("s_lshl_b32 s39, s37, 1\ns_add_u32 s39, s39, s38")
    A(f"s_cmp_ge_u32 s39, 15\ns_cbranch_scc1 L_{name}_end")
    A("v_and_b32 v2, 15, v1")
    A("v_lshrrev_b32 v3, 4, v1")
    A("v_lshlrev_b32 v4, 12, v3")
    A("v_lshl_add_u32 v4, v2, 2, v4")
    A("v_lshlrev_b32 v7, 4, v1")
    A("s_lshl_b32 s40, s36, 16\ns_lshl_b32 s41, s39, 6\ns_add_u32 s40, s40, s41")
    A("s_add_u32 s41, s40, 16384\ns_add_u32 s42, s40, 32768\ns_add_u32 s43, s40, 49152")
    A("s_waitcnt lgkmcnt(0)")
    srd(A, 20, 10, 11, 0x200000, WS_T)
    for ks in range(4):
        for r in range(4):
            A(f"buffer_load_dword v{16+4*ks+r}, v4, s[20:23], s{40+ks} offen offset:{r*1024}")
    srd(A, 32, 10, 11, 1024, WS_MAX)
    A("buffer_load_dwordx4 v[8:11], v7, s[32:35], 0 offen")
    A("s_mov_b32 s44, 0")
    for mt in range(4):
        for ks in range(4):
            A(f"buffer_load_dwordx4 {v4(64+16*mt+4*ks)}, v7, s[16:19], s44 offen offset:{ks*1024}")
        if mt < 3: A("s_add_u32 s44, s44, 4096")
    srd(A, 24, 4, 5, S*225*2)
    srd(A, 28, 6, 7, S*225*2)
    A("s_and_b32 s45, s39, 7\ns_lshl_b32 s45, s45, 5\ns_lshr_b32 s46, s39, 3\ns_add_u32 s45, s45, s46")
    A("v_lshl_add_u32 v5, v2, 1, s45")
    A("v_lshlrev_b32 v6, 7, v3")
    A("v_add_u32 v6, s36, v6")
    A("v_mul_u32_u24 v6, 450, v6")
    A("v_lshl_add_u32 v6, v5, 1, v6")
    A("v_cmp_ge_u32 vcc, 224, v5")
    A(f"v_mov_b32 v12, {OOB:#x}")
    A("v_cndmask_b32 v6, v12, v6, vcc")
    for i in range(32): A(f"v_mov_b32 v{128+i}, 0")
    for mt in range(4):
        for r in range(4):
            A(f"s_mov_b32 s47, {(16*mt+r)*14400}")
            A(f"buffer_load_short_d16_hi v{128+4*mt+r}, v6, s[24:27], s47 offen")
            A(f"buffer_load_short_d16_hi v{144+4*mt+r}, v6, s[28:31], s47 offen")
    srd(A, 20+28, 10, 11, 0x200000, WS_TP)
    srd(A, 52, 10, 11, 64, WS_SCALE)
    A("v_cmp_eq_u32 vcc, 0, v5")
    A("v_cmp_eq_u32 s[56:57], 0xe0, v5") if False else None
    A("s_movk_i32 s58, 224")
    A("v_cmp_eq_u32 s[56:57], s58, v5")
    A("s_or_b64 vcc, vcc, s[56:57]")
    A("v_mov_b32 v13, 1.0")
    A("v_cndmask_b32 v13, v13, 0.5, vcc") if False else A("v_mov_b32 v14, 0.5\nv_cndmask_b32 v13, v13, v14, vcc")
    A("v_lshlrev_b32 v15, 15, v2")
    A("v_lshl_add_u32 v15, v3, 4, v15")
    A("s_lshl_b32 s59, s36, 10\ns_lshl_b32 s60, s39, 6\ns_add_u32 s59, s59, s60")
    A("s_mov_b32 s61, 0xbc003c00")
    A("s_waitcnt vmcnt(49)")
    for i in range(16):
        A(f"v_pk_mul_f16 v{32+i}, v{16+i}, s61 op_sel:[1,0] op_sel_hi:[0,1]")
    A("s_waitcnt vmcnt(48)")
    A("v_max3_u32 v8, v8, v9, v10\nv_max_u32 v8, v8, v11")
    reduce_rows(A, [8], [9], op="v_max_u32", full=True)
    A("v_lshrrev_b32 v8, 7, v8")
    A("v_max_u32 v8, 8, v8")
    A("v_min_u32 v8, 250, v8") if False else A("v_mov_b32 v9, 250\nv_min_u32 v8, v9, v8")
    A("v_sub_u32 v9, 252, v8") if False else A("v_mov_b32 v9, 252\nv_sub_u32 v9, v9, v8")
    A("v_lshlrev_b32 v9, 23, v9")
    A("v_mul_f32 v12, v9, v13")
    A("v_add_u32 v8, 2, v8\nv_lshlrev_b32 v8, 23, v8")
    A("v_mul_f32 v8, 0x3d924925, v8")
    A("v_mov_b32 v9, 0")
    for mt in range(4):
        A(f"s_waitcnt vmcnt({32+12-4*mt})")
        for ks in range(4):
            m = v4(64+16*mt+4*ks)
            A(f"v_mfma_f32_16x16x32_f16 {v4(160+4*mt)}, {m}, {v4(16+4*ks)}, {'0' if ks==0 else v4(160+4*mt)}")
            A(f"v_mfma_f32_16x16x32_f16 {v4(176+4*mt)}, {m}, {v4(32+4*ks)}, {'0' if ks==0 else v4(176+4*mt)}")
    A("s_or_b32 s62, s2, s38\ns_cmp_lg_u32 s62, 0\ns_cbranch_scc1 L_B_noscale")
    A("s_mov_b64 exec, 1")
    A("buffer_store_dword v8, v9, s[52:55], 0 offen")
    A("s_mov_b64 exec, -1")
    A("L_B_noscale:")
    A("s_waitcnt vmcnt(0)")
    for i in range(16):
        A(f"v_pk_mul_f32 {v2(128+2*i)}, {v2(128+2*i)}, v[12:13] op_sel_hi:[1,0]")
    for mt in range(4):
        for h in range(2):
            xr = 160+4*mt+2*h; xi = 176+4*mt+2*h; wr = 128+4*mt+2*h; wi = 144+4*mt+2*h
            A(f"v_pk_mul_f32 v[192:193], {v2(xr)}, {v2(wr)}")
            A(f"v_pk_mul_f32 v[194:195], {v2(xr)}, {v2(wi)}")
            A(f"v_pk_fma_f32 v[192:193], {v2(xi)}, {v2(wi)}, v[192:193] neg_lo:[1,0,0] neg_hi:[1,0,0]")
            A(f"v_pk_fma_f32 v[194:195], {v2(xi)}, {v2(wr)}, v[194:195]")
            for e in range(2):
                A(f"v_cvt_pk_f16_f32 v{16+4*mt+2*h+e}, v{192+e}, -v{194+e}")
                A(f"v_cvt_pk_f16_f32 v{32+4*mt+2*h+e}, v{194+e}, v{192+e}")
    for nt in range(4):
        for ks in range(4):
            m = v4(64+16*nt+4*ks)
            A(f"v_mfma_f32_16x16x32_f16 {v4(200+4*nt)}, {v4(16+4*ks)}, {m}, {'0' if ks==0 else v4(200+4*nt)}")
            A(f"v_mfma_f32_16x16x32_f16 {v4(216+4*nt)}, {v4(32+4*ks)}, {m}, {'0' if ks==0 else v4(216+4*nt)}")
    for nt in range(4):
        for r in range(4):
            A(f"v_cvt_pk_f16_f32 v{232+4*nt+r}, v{200+4*nt+r}, v{216+4*nt+r}")
        A(f"buffer_store_dwordx4 {v4(232+4*nt)}, v15, s[48:51], s59 offen")
        if nt < 3: A("s_add_u32 s59, s59, 0x80000")
    tail(A, name)
    return A.finalize(), desc(name, 248)

ZP, ZPB = 160, 2560
Z_DUMMY = 4*ZPB
HX = 4*ZPB + 64
def kernel_C():
    A = Asm(); name = "kC_kernel"
    head(A, name, 256)
    A("s_load_dwordx2 s[4:5], s[0:1], 0\ns_load_dwordx2 s[10:11], s[0:1], 80")
    A("s_and_b32 s36, s2, 63")
    A("s_lshr_b32 s37, s2, 6")
    A("v_lshrrev_b32 v2, 6, v0")
    A("v_and_b32 v1, 63, v0")
    A("v_readfirstlane_b32 s38, v2")
    srd_tbl(A, 16, "tblC", 14336)
    A("s_mov_b32 s60, 0x3b124925\ns_mov_b32 s61, 0x3727c5ac")
    A("v_and_b32 v2, 15, v1")
    A("v_lshrrev_b32 v3, 4, v1")
    A("v_lshlrev_b32 v4, 12, v3")
    A("v_lshl_add_u32 v4, v2, 2, v4")
    A("v_lshlrev_b32 v7, 4, v1")
    A("s_lshl_b32 s40, s36, 15\ns_lshl_b32 s41, s38, 6\ns_add_u32 s40, s40, s41")
    A("s_add_u32 s41, s40, 16384")
    A("s_waitcnt lgkmcnt(0)")
    A(f"s_add_u32 s6, s10, {WS_SCALE:#x}\ns_addc_u32 s7, s11, 0")
    A("s_load_dword s62, s[6:7], 0")
    srd(A, 20, 10, 11, 0x200000, WS_TP)
    for i in range(4):
        for ks in range(2):
            for r in range(4):
                A(f"buffer_load_dword v{64+8*i+4*ks+r}, v4, s[20:23], s{40+ks} offen offset:{r*1024+i*256}")
    srd(A, 12, 4, 5, S*D*2)
    A("v_mul_u32_u24 v5, 56, v2")
    A("v_lshl_add_u32 v5, v3, 3, v5")
    A("v_add_u32 v6, 32, v5")
    A("v_cmp_gt_u32 vcc, 48, v1")
    A(f"v_mov_b32 v8, {OOB:#x}")
    A("v_cndmask_b32 v6, v8, v6, vcc")
    A("v_mov_b32 v8, 0\nv_mov_b32 v9, 1.0\nv_cndmask_b32 v9, v8, v9, vcc")
    A("s_lshl_b32 s42, s37, 9\ns_lshl_b32 s43, s38, 7\ns_add_u32 s42, s42, s43\ns_add_u32 s42, s42, s36")
    A("s_mul_i32 s43, s42, 896\ns_add_u32 s44, s43, 57344")
    A("buffer_load_dwordx2 v[96:97], v5, s[12:15], s43 offen")
    A("buffer_load_dwordx2 v[98:99], v6, s[12:15], s43 offen")
    A("buffer_load_dwordx2 v[100:101], v5, s[12:15], s44 offen")
    A("buffer_load_dwordx2 v[102:103], v6, s[12:15], s44 offen")
    A("s_mov_b32 s45, 0")
    for f in range(14):
        A(f"buffer_load_dwordx4 {v4(104+4*f)}, v7, s[16:19], s45 offen offset:{(f%4)*1024}")
        if f % 4 == 3: A("s_add_u32 s45, s45, 4096")
    srd(A, 24, 10, 11, S*D*2, WS_H)
    srd(A, 28, 10, 11, S*D*2, WS_HT)
    A("v_mov_b32 v10, 0\nv_mov_b32 v11, 0\nv_mov_b32 v12, 0\nv_mov_b32 v13, 0")
    A(f"v_mul_u32_u24 v14, {ZP}, v1")
    A("s_cmp_lg_u32 s38, 0\ns_cbranch_scc1 L_C_nz")
    A("ds_write_b128 v14, v[10:13] offset:112")
    A("L_C_nz:")
    A("v_lshrrev_b32 v10, 2, v2")
    A("v_and_b32 v11, 3, v2")
    A("v_lshlrev_b32 v10, 7, v10")
    A("s_lshl_b32 s46, s37, 9\ns_add_u32 s46, s46, s36")
    A("v_add_u32 v10, s46, v10")
    A("v_cvt_f32_u32 v10, v10")
    A("v_mul_f32 v10, 0x3a000000, v10")
    A("v_add_f32 v12, 0x3d000000, v10")
    A("v_cvt_f32_u32 v13, v11")
    A("v_and_b32 v14, 1, v11")
    A("v_cvt_f32_u32 v14, v14")
    A("v_add_f32 v15, -2.0, v13")
    A("v_mul_f32 v15, 0x3e800000, v15")
    A("v_mul_f32 v15, v14, v15")
    A("v_sub_f32 v16, 1.0, v13")
    A("v_mul_f32 v16, 0x3e800000, v16")
    A("v_sub_f32 v14, 1.0, v14")
    A("v_mul_f32 v16, v14, v16")
    A("v_lshlrev_b32 v17, 2, v3")
    A("v_cvt_f32_u32 v17, v17")
    for ks in range(2):
        for r in range(4):
            cb = int(np.float32(16*ks + r).view(np.uint32))
            A(f"v_add_f32 v18, {cb:#x}, v17")
            A("v_fma_f32 v19, v18, v10, v15")
            A("v_fma_f32 v20, v18, v12, v16")
            A("v_cos_f32 v21, v19\nv_cos_f32 v22, v20\nv_sin_f32 v23, v19\nv_sin_f32 v24, v20")
            A("v_add_f32 v21, v21, v22\nv_add_f32 v23, v23, v24")
            A(f"v_cvt_pk_f16_f32 v{160+4*ks+r}, v21, -v23")
    A(f"v_mul_u32_u24 v25, {ZPB}, v3")
    for i in range(4):
        A(f"s_add_u32 s47, s38, {4*i}")
        A("s_and_b32 s48, s47, 7\ns_lshl_b32 s48, s48, 5\ns_lshr_b32 s49, s47, 3\ns_add_u32 s48, s48, s49")
        A("v_lshl_add_u32 v26, v2, 1, s48")
        A("v_and_b32 v27, 15, v26\nv_lshrrev_b32 v28, 4, v26")
        A(f"v_mul_u32_u24 v27, {ZP}, v27")
        A("v_lshl_add_u32 v27, v28, 2, v27")
        A(f"v_add_u32 v{168+2*i}, v25, v27")
        A("v_sub_u32 v29, 0x1c0, v26")
        A("v_and_b32 v27, 15, v29\nv_lshrrev_b32 v28, 4, v29")
        A(f"v_mul_u32_u24 v27, {ZP}, v27")
        A("v_lshl_add_u32 v27, v28, 2, v27")
        A(f"v_add_u32 v{169+2*i}, v25, v27")
        if i in (0, 1, 3):
            A(f"v_mov_b32 v27, {Z_DUMMY}")
            A("s_movk_i32 s50, 224")
            A("v_cmp_lt_u32 vcc, s50, v26")
            A(f"v_cndmask_b32 v{168+2*i}, v{168+2*i}, v27, vcc")
            A("v_cmp_le_u32 vcc, s50, v26")
            A(f"v_cmp_eq_u32 s[{64+2*i}:{65+2*i}], 0, v26")
            A(f"s_or_b64 s[{64+2*i}:{65+2*i}], s[{64+2*i}:{65+2*i}], vcc")
            A(f"v_cndmask_b32 v{169+2*i}, v{169+2*i}, v27, s[{64+2*i}:{65+2*i}]")
    for i in range(4):
        A(f"s_waitcnt vmcnt({18 + 8*(3-i)})")
        A(f"v_mfma_f32_16x16x32_f16 {v4(32+4*i)}, v[160:163], {v4(64+8*i)}, 0")
        A(f"v_mfma_f32_16x16x32_f16 {v4(32+4*i)}, v[164:167], {v4(68+8*i)}, {v4(32+4*i)}")
    for i in range(4):
        a = 32+4*i
        if i in (0, 1):
            A(f"v_cndmask_b32 v26, 0, v{a+2}, s[{64+2*i}:{65+2*i}]")
            A(f"v_cndmask_b32 v27, 0, v{a+3}, s[{64+2*i}:{65+2*i}]")
            A(f"v_add_f32 v{a}, v{a}, v26\nv_add_f32 v{a+1}, v{a+1}, v27")
        A(f"v_cvt_pk_f16_f32 v{48+2*i}, v{a}, v{a+1}")
        A(f"v_cvt_pk_f16_f32 v{49+2*i}, v{a+2}, v{a+3}")
        A(f"ds_write_b32 v{168+2*i}, v{48+2*i}")
        A(f"ds_write_b32 v{169+2*i}, v{49+2*i}")
    A(f"v_mul_u32_u24 v26, {ZP}, v2")
    A("v_lshl_add_u32 v26, v3, 4, v26")
    A(f"s_mul_i32 s47, s38, {ZPB}")
    A("v_add_u32 v26, s47, v26")
    A("s_waitcnt lgkmcnt(0)")
    A("s_barrier")
    A("ds_read_b128 v[32:35], v26\nds_read_b128 v[36:39], v26 offset:64")
    A("s_waitcnt vmcnt(0) lgkmcnt(0)")
    for ks in range(2):
        for dt in range(2):
            for ri in range(2):
                a = 40+8*dt+4*ri
                A(f"v_mfma_f32_16x16x32_f16 {v4(a)}, {v4(32+4*ks)}, {v4(104+4*(4*ks+2*dt+ri))}, {'0' if ks==0 else v4(a)}")
    for row in range(2):
        for k in range(4):
            A(f"v_lshlrev_b32 v{64+8*row+2*k}, 16, v{96+4*row+k}")
            A(f"v_and_b32 v{65+8*row+2*k}, 0xffff0000, v{96+4*row+k}")
    for dt in range(2):
        for h in range(2):
            gr = 40+8*dt+2*h; gi = 44+8*dt+2*h; tc = 136+8*dt+2*h; ts = 140+8*dt+2*h
            A(f"v_pk_mul_f32 v[56:57], {v2(gr)}, {v2(tc)}")
            A(f"v_pk_mul_f32 v[58:59], {v2(gr)}, {v2(ts)}")
            A(f"v_pk_fma_f32 v[56:57], {v2(gi)}, {v2(ts)}, v[56:57] neg_lo:[1,0,0] neg_hi:[1,0,0]")
            A(f"v_pk_fma_f32 v[58:59], {v2(gi)}, {v2(tc)}, v[58:59]")
            for e in range(2):
                A(f"v_cvt_pk_f16_f32 v{32+4*dt+2*h+e}, v{56+e}, v{58+e}")
    for dt in range(2):
        for ri in range(2):
            A(f"v_mfma_f32_16x16x32_f16 {v4(80+8*ri+4*dt)}, {v4(32+4*dt)}, {v4(152+4*ri)}, 0")
    A("s_mov_b32 s63, s62")
    Z = [80, 88]; X = [64, 72]; PK = [96, 100]
    for k in range(4):
        for row in range(2):
            A(f"v_pk_mul_f32 {v2(Z[row]+2*k)}, {v2(Z[row]+2*k)}, s[62:63]")
    for row in range(2): bf_round_arr(A, Z[row], 8, PK[row])
    for k in range(4):
        for row in range(2):
            A(f"v_pk_add_f32 {v2(X[row]+2*k)}, {v2(X[row]+2*k)}, {v2(Z[row]+2*k)}")
    for row in range(2): bf_round_arr(A, X[row], 8, PK[row])
    A("buffer_store_dwordx2 v[96:97], v5, s[24:27], s43 offen")
    A("buffer_store_dwordx2 v[98:99], v6, s[24:27], s43 offen")
    A("buffer_store_dwordx2 v[100:101], v5, s[24:27], s44 offen")
    A("buffer_store_dwordx2 v[102:103], v6, s[24:27], s44 offen")
    PK = [104, 108]
    st = [dict(mu=112, m=114, ss=116, t0=118, acc=120, acc2=122), dict(mu=113, m=124, ss=126, t0=119, acc=128, acc2=130)]
    for it in range(2):
        for row in range(2):
            R = st[row]; x = X[row]
            A(f"v_pk_add_f32 {v2(R['acc'])}, {v2(x)}, {v2(x+2)}")
            A(f"v_pk_add_f32 {v2(R['acc2'])}, {v2(x+4)}, {v2(x+6)}")
        for row in range(2):
            R = st[row]
            A(f"v_add_f32 v{R['acc']}, v{R['acc']}, v{R['acc']+1}")
            A(f"v_add_f32 v{R['acc2']}, v{R['acc2']}, v{R['acc2']+1}")
        for row in range(2):
            R = st[row]
            A(f"v_fma_f32 v{R['mu']}, v{R['acc2']}, v9, v{R['acc']}")
        reduce_rows(A, [s_['mu'] for s_ in st], [s_['t0'] for s_ in st], full=True)
        for R in st: A(f"v_mul_f32 v{R['mu']}, s60, v{R['mu']}")
        for R in st: bf_round_scalar(A, R['m'], R['mu'])
        for k in range(4):
            for row in range(2):
                A(f"v_pk_add_f32 {v2(X[row]+2*k)}, {v2(X[row]+2*k)}, {v2(st[row]['m'])} op_sel_hi:[1,0] neg_lo:[0,1] neg_hi:[0,1]")
        for row in range(2):
            R = st[row]; x = X[row]
            A(f"v_pk_mul_f32 {v2(R['acc'])}, {v2(x)}, {v2(x)}")
            A(f"v_pk_mul_f32 {v2(R['acc2'])}, {v2(x+4)}, {v2(x+4)}")
        for row in range(2):
            R = st[row]; x = X[row]
            A(f"v_pk_fma_f32 {v2(R['acc'])}, {v2(x+2)}, {v2(x+2)}, {v2(R['acc'])}")
            A(f"v_pk_fma_f32 {v2(R['acc2'])}, {v2(x+6)}, {v2(x+6)}, {v2(R['acc2'])}")
        for row in range(2):
            R = st[row]
            A(f"v_add_f32 v{R['acc']}, v{R['acc']}, v{R['acc']+1}")
            A(f"v_add_f32 v{R['acc2']}, v{R['acc2']}, v{R['acc2']+1}")
        for row in range(2):
            R = st[row]
            A(f"v_fma_f32 v{R['ss']}, v{R['acc2']}, v9, v{R['acc']}")
        reduce_rows(A, [s_['ss'] for s_ in st], [s_['t0'] for s_ in st], full=True)
        ln_stats_tail(A, st)
        for row in range(2): bf_round_arr(A, X[row], 8, PK[row])
        for k in range(4):
            for row in range(2):
                A(f"v_pk_mul_f32 {v2(X[row]+2*k)}, {v2(X[row]+2*k)}, {v2(st[row]['ss'])} op_sel_hi:[1,0]")
        if it == 0:
            for row in range(2): bf_round_arr(A, X[row], 8, PK[row])
    for k in range(8):
        A(f"v_cvt_pk_bf16_f32 v{80+k}, v{X[0]+k}, v{X[1]+k}")
    A("v_lshlrev_b32 v26, 3, v5")
    A(f"s_lshl_b32 s47, s38, 2\ns_add_u32 s47, s47, {HX}")
    A("v_add_u32 v26, s47, v26")
    for r in range(4):
        A(f"ds_write_b32 v26, v{80+r} offset:{16*r}")
    A("s_mov_b32 exec_hi, 0xffff")
    for r in range(4):
        A(f"ds_write_b32 v26, v{84+r} offset:{256+16*r}")
    A("s_mov_b64 exec, -1")
    A("v_lshlrev_b32 v27, 4, v0")
    A("s_lshl_b32 s47, s36, 2\ns_add_u32 s47, s47, s37\ns_mul_i32 s47, s47, 7168")
    A("s_waitcnt lgkmcnt(0)")
    A("s_barrier")
    A(f"ds_read_b128 v[32:35], v27 offset:{HX}")
    A("s_cmp_ge_u32 s38, 3\ns_cbranch_scc1 L_C_w3")
    A(f"ds_read_b128 v[36:39], v27 offset:{HX+4096}")
    A("s_waitcnt lgkmcnt(0)")
    A("s_add_u32 s48, s47, 4096")
    A("buffer_store_dwordx4 v[36:39], v27, s[28:31], s48 offen")
    A("L_C_w3:")
    A("s_waitcnt lgkmcnt(0)")
    A("buffer_store_dwordx4 v[32:35], v27, s[28:31], s47 offen")
    tail(A, name)
    return A.finalize(), desc(name, 176)

def gemm(which):
    g1 = which == 1
    A = Asm(); name = "kD_kernel" if g1 else "kE_kernel"
    P = "D" if g1 else "E"
    NWG = 224 if g1 else 256
    NS = 32 if g1 else 28
    RING = 8 if g1 else 7
    WPITCH = F*2 if g1 else S*2
    WBYTES = S*F*2
    TBYTES = S*D*2 if g1 else F*D*2
    TOFF = WS_HT if g1 else WS_UT
    WSTEP = 2*WPITCH if g1 else 64*WPITCH
    head(A, name, NWG)
    if g1:
        A("s_load_dwordx4 s[4:7], s[0:1], 32")
    else:
        A("s_load_dwordx4 s[4:7], s[0:1], 48")
        A("s_load_dwordx2 s[8:9], s[0:1], 64")
    A("s_load_dwordx2 s[10:11], s[0:1], 80")
    PER = 7 if g1 else 8
    A("s_and_b32 s36, s2, 7\ns_lshr_b32 s37, s2, 3")
    A("s_and_b32 s39, s36, 1\ns_lshl_b32 s39, s39, 2\ns_and_b32 s40, s37, 3\ns_add_u32 s39, s39, s40")
    A(f"s_lshr_b32 s40, s36, 1\ns_mul_i32 s40, s40, {PER}\ns_lshr_b32 s41, s37, 2\ns_add_u32 s40, s40, s41")
    A("v_lshrrev_b32 v2, 6, v0")
    A("v_and_b32 v1, 63, v0")
    A("v_readfirstlane_b32 s38, v2")
    A("v_and_b32 v2, 15, v1")
    A("v_lshrrev_b32 v3, 4, v1")
    A("v_lshlrev_b32 v4, 4, v1")
    A("v_cmp_gt_u32 vcc, 56, v1")
    A(f"v_mov_b32 v8, {OOB:#x}")
    A("v_cndmask_b32 v4, v8, v4, vcc")
    A("v_lshrrev_b32 v8, 3, v1")
    A("v_and_b32 v9, 7, v1")
    A("v_and_b32 v10, 2, v8")
    A("s_and_b32 s41, s38, 1\ns_lshl_b32 s41, s41, 2")
    A("v_or_b32 v10, s41, v10")
    A("v_xor_b32 v9, v9, v10")
    if g1:
        A(f"s_mov_b32 s42, {64*WPITCH}")
        A("v_mul_lo_u32 v5, v8, s42")
    else:
        A("v_and_b32 v10, 3, v8\nv_lshrrev_b32 v11, 2, v8\nv_lshl_add_u32 v10, v11, 4, v10")
        A("v_lshlrev_b32 v5, 12, v10")
    A("v_lshl_add_u32 v5, v9, 4, v5")
    A("s_mul_i32 s44, s38, 7168\ns_mul_i32 s43, s39, 896\ns_add_u32 s44, s44, s43\ns_add_u32 s45, s44, 28672")
    A("s_lshl_b32 s43, s40, 7")
    if g1:
        A(f"s_mul_i32 s46, s38, {512*WPITCH}\ns_add_u32 s46, s46, s43\ns_add_u32 s47, s46, {WPITCH}")
    else:
        A(f"s_mul_i32 s46, s38, {4*WPITCH}\ns_add_u32 s46, s46, s43\ns_add_u32 s47, s46, {32*WPITCH}")
    A("s_lshl_b32 s48, s38, 10")
    A("s_lshr_b32 s49, s38, 1\ns_and_b32 s50, s38, 1")
    A("v_lshlrev_b32 v6, 10, v3")
    A("v_lshl_add_u32 v6, v2, 4, v6")
    A("s_lshl_b32 s51, s50, 9")
    A("v_add_u32 v6, s51, v6")
    A("v_add_u32 v7, 0x10000, v6")
    A("v_lshrrev_b32 v8, 2, v2")
    A("v_lshl_add_u32 v8, v3, 3, v8")
    A("v_lshlrev_b32 v8, 7, v8")
    A("v_and_b32 v9, 3, v2")
    A("v_lshl_add_u32 v8, v9, 3, v8")
    A("v_add_u32 v8, 0x2000, v8")
    A("v_lshrrev_b32 v9, 3, v2")
    A("v_and_b32 v10, 1, v3")
    A("v_lshl_or_b32 v9, v10, 1, v9")
    A("s_lshl_b32 s51, s49, 1")
    A("v_xor_b32 v10, s51, v9")
    A("v_lshl_add_u32 v12, v10, 5, v8")
    A("v_xor_b32 v10, 1, v10")
    A("v_lshl_add_u32 v13, v10, 5, v8")
    A("v_add_u32 v14, 0x10000, v12\nv_add_u32 v15, 0x10000, v13")
    A("s_waitcnt lgkmcnt(0)")
    srd(A, 12, 4, 5, WBYTES)
    srd(A, 16, 10, 11, TBYTES, TOFF)
    def issue(slot):
        base = slot*16384
        A(f"s_add_u32 m0, s48, {base}")
        A("buffer_load_dwordx4 v4, s[16:19], s44 offen lds")
        A(f"s_add_u32 m0, s48, {base+4096}")
        A("buffer_load_dwordx4 v4, s[16:19], s45 offen lds")
        A(f"s_add_u32 m0, s48, {base+8192}")
        A("buffer_load_dwordx4 v5, s[12:15], s46 offen lds")
        A(f"s_add_u32 m0, s48, {base+12288}")
        A("buffer_load_dwordx4 v5, s[12:15], s47 offen lds")
        A("s_add_u32 s44, s44, 57344\ns_add_u32 s45, s45, 57344")
        A(f"s_add_u32 s46, s46, s52\ns_add_u32 s47, s47, s52")
    A(f"s_mov_b32 s52, {WSTEP}")
    for sl in range(RING-1): issue(sl)
    NPRE = 0
    if g1:
        srd(A, 20, 6, 7, F*2)
        srd(A, 24, 10, 11, F*D*2, WS_UT)
        A("s_lshl_b32 s53, s40, 7\ns_lshl_b32 s54, s49, 6\ns_add_u32 s53, s53, s54")
        A("v_lshlrev_b32 v16, 3, v3")
        A("buffer_load_dwordx2 v[20:21], v16, s[20:23], s53 offen")
        A("buffer_load_dwordx2 v[22:23], v16, s[20:23], s53 offen offset:32")
        NPRE = 2
    else:
        srd(A, 20, 6, 7, S*2)
        srd(A, 24, 8, 9, S*D*2)
        srd(A, 28, 10, 11, S*D*2, WS_H)
        A("s_lshl_b32 s53, s40, 7\ns_lshl_b32 s54, s49, 6\ns_add_u32 s53, s53, s54")
        A("v_lshlrev_b32 v16, 1, v2")
        A("buffer_load_ushort v20, v16, s[20:23], s53 offen")
        A("buffer_load_ushort v21, v16, s[20:23], s53 offen offset:32")
        A("v_mul_u32_u24 v17, 896, v2")
        A("v_lshl_add_u32 v17, v3, 3, v17")
        A("s_lshl_b32 s54, s50, 6")
        A("v_add_u32 v17, s54, v17")
        A("v_add_u32 v18, 32, v17")
        A("s_lshl_b32 s54, s50, 5")
        A("v_add_u32 v19, s54, v1")
        A("v_cmp_gt_u32 vcc, 64, v19")
        A(f"v_mov_b32 v19, {OOB:#x}")
        A("v_cndmask_b32 v18, v19, v18, vcc")
        A("s_lshl_b32 s55, s40, 6\ns_lshl_b32 s54, s49, 5\ns_add_u32 s55, s55, s54\ns_mul_i32 s55, s55, 896")
        A("s_mul_i32 s54, s39, 112\ns_add_u32 s55, s55, s54\ns_add_u32 s56, s55, 14336")
        for mt in range(2):
            for nt in range(2):
                A(f"buffer_load_dwordx2 {v2(24+4*mt+2*nt)}, v{17+nt}, s[28:31], s{55+mt} offen")
        NPRE = 6
    for i in range(16): A(f"v_mov_b32 v{32+i}, 0")
    for i in range(16): A(f"v_mov_b32 v{64+i}, 0")
    def reads(slot, ks):
        base = slot*16384 + ks*4096
        hi = base >= 65536
        off = base - (65536 if hi else 0)
        for nt in range(2):
            A(f"ds_read_b128 {v4(56+16*ks+4*nt)}, v{7 if hi else 6} offset:{off+256*nt}")
        for mt in range(2):
            for half in range(2):
                A(f"ds_read_b64_tr_b16 {v2(48+16*ks+4*mt+2*half)}, v{(14 if hi else 12)+mt} offset:{off+512*half}")
    def mfmas(ks):
        for mt in range(2):
            for nt in range(2):
                a = v4(32+8*mt+4*nt); w = v4(48+16*ks+4*mt); t = v4(56+16*ks+4*nt)
                if g1: A(f"v_mfma_f32_16x16x32_bf16 {a}, {w}, {t}, {a}")
                else:  A(f"v_mfma_f32_16x16x32_bf16 {a}, {t}, {w}, {a}")
    A("s_mov_b32 s57, 0")
    NIT = NS // RING
    A(f"s_waitcnt vmcnt({4*(RING-2)})")
    A(f"L_{P}_loop:")
    for sl in range(RING):
        A(f"s_waitcnt vmcnt({4*(RING-2)}) lgkmcnt(0)")
        A("s_barrier")
        if sl == 1:
            A(f"s_cmp_eq_u32 s57, {NIT-1}")
            A(f"s_cselect_b32 s46, {OOB:#x}, s46\ns_cselect_b32 s47, {OOB:#x}, s47\ns_cselect_b32 s52, 0, s52")
        issue((sl + RING - 1) % RING)
        reads(sl, 0)
        mfmas(1)
        reads(sl, 1)
        A("s_waitcnt lgkmcnt(6)")
        mfmas(0)
    A("s_add_u32 s57, s57, 1")
    A(f"s_cmp_lt_u32 s57, {NIT}")
    A(f"s_cbranch_scc1 L_{P}_loop")
    A("s_waitcnt lgkmcnt(0)")
    mfmas(1)
    if g1:
        A("v_mul_u32_u24 v16, 7168, v3")
        A("v_lshl_add_u32 v16, v2, 4, v16")
        A("v_add_u32 v17, 256, v16")
        A("s_lshl_b32 s54, s50, 3")
        A("v_add_u32 v19, s54, v2")
        A("v_cmp_gt_u32 vcc, 16, v19")
        A(f"v_mov_b32 v19, {OOB:#x}")
        A("v_cndmask_b32 v17, v19, v17, vcc")
        A("s_lshl_b32 s53, s40, 1\ns_add_u32 s53, s53, s49\ns_mul_i32 s53, s53, 28672")
        A("s_mul_i32 s54, s39, 896\ns_add_u32 s53, s53, s54\ns_lshl_b32 s54, s50, 9\ns_add_u32 s53, s53, s54")
        for k in range(4):
            A(f"v_lshlrev_b32 v{24+2*k}, 16, v{20+k}")
            A(f"v_and_b32 v{25+2*k}, 0xffff0000, v{20+k}")
        c1 = -2.0*0.7978845608028654*1.4426950408889634
        c2 = c1*0.044715
        A(f"s_mov_b32 s58, {int(np.float32(c1).view(np.uint32)):#x}\ns_mov_b32 s59, s58")
        A(f"s_mov_b32 s60, {int(np.float32(c2).view(np.uint32)):#x}\ns_mov_b32 s61, s60")
        A("v_mov_b32 v80, s58\nv_mov_b32 v81, s58")
        bf_round_arr(A, 32, 16, 48)
        for mt in range(2):
            for nt in range(2):
                for h in range(2):
                    a = 32+8*mt+4*nt+2*h
                    A(f"v_pk_add_f32 {v2(a)}, {v2(a)}, {v2(24+4*mt+2*h)}")
        bf_round_arr(A, 32, 16, 48)
        for k in range(8): A(f"v_pk_mul_f32 {v2(64+2*k)}, {v2(32+2*k)}, {v2(32+2*k)}")
        for k in range(8): A(f"v_pk_fma_f32 {v2(64+2*k)}, {v2(64+2*k)}, s[60:61], v[80:81]")
        for k in range(8): A(f"v_pk_mul_f32 {v2(64+2*k)}, {v2(64+2*k)}, {v2(32+2*k)}")
        for k in range(16): A(f"v_exp_f32 v{64+k}, v{64+k}")
        for k in range(16): A(f"v_add_f32 v{64+k}, 1.0, v{64+k}")
        for k in range(16): A(f"v_rcp_f32 v{64+k}, v{64+k}")
        for k in range(8): A(f"v_pk_mul_f32 {v2(32+2*k)}, {v2(32+2*k)}, {v2(64+2*k)}")
        for nt in range(2):
            for mt in range(2):
                for h in range(2):
                    a = 32+8*mt+4*nt+2*h
                    A(f"v_cvt_pk_bf16_f32 v{48+4*nt+2*mt+h}, v{a}, v{a+1}")
            A(f"buffer_store_dwordx4 {v4(48+4*nt)}, v{16+nt}, s[24:27], s53 offen")
    else:
        A("v_lshlrev_b32 v20, 16, v20\nv_lshlrev_b32 v22, 16, v21")
        for k in range(8):
            A(f"v_lshlrev_b32 v{64+2*k}, 16, v{24+k}")
            A(f"v_and_b32 v{65+2*k}, 0xffff0000, v{24+k}")
        bf_round_arr(A, 32, 16, 48)
        for mt in range(2):
            for k in range(4):
                a = 32+8*mt+2*k
                A(f"v_pk_add_f32 {v2(a)}, {v2(a)}, {v2(20+2*mt)} op_sel_hi:[1,0]")
        bf_round_arr(A, 32, 16, 48)
        for k in range(8): A(f"v_pk_add_f32 {v2(32+2*k)}, {v2(32+2*k)}, {v2(64+2*k)}")
        for k in range(8): A(f"v_cvt_pk_bf16_f32 v{48+k}, v{32+2*k}, v{33+2*k}")
        for mt in range(2):
            for nt in range(2):
                A(f"buffer_store_dwordx2 {v2(48+4*mt+2*nt)}, v{17+nt}, s[24:27], s{55+mt} offen")
    tail(A, name)
    return A.finalize(), desc(name, 84)

def main(out):
    ks = [kernel_A(), kernel_B(), kernel_C(), gemm(1), gemm(2)]
    hdr = open("sequential_preLN__spectral_gfnet__mixer_token_mlp__prompt.s.ref").read().split("\n")
    hdr = [l for l in hdr if l.startswith(";") and "@launch" not in l and "Override" not in l and "grid=ceil" not in l]
    L = "\n".join(hdr) + "\n"
    L += f"; @launch kernel=kA_kernel grid=(256,1,1) block=(512,1,1) lds={32*LDS_A_PITCH}\n"
    L += "; @launch kernel=kB_kernel grid=(256,1,1) block=(128,1,1) lds=0\n"
    L += f"; @launch kernel=kC_kernel grid=(256,1,1) block=(256,1,1) lds={HX+7168}\n"
    L += "; @launch kernel=kD_kernel grid=(224,1,1) block=(256,1,1) lds=131072\n"
    L += "; @launch kernel=kE_kernel grid=(256,1,1) block=(256,1,1) lds=114688\n"
    L += '.amdgcn_target "amdgcn-amd-amdhsa--gfx950"\n.text\n'
    for code, _ in ks: L += code
    L += '.section .rodata,"a"\n'
    for _, d in ks: L += d
    L += emit_table("tblA", table_A()) + emit_table("tblB", table_B()) + emit_table("tblC", table_C())
    open(out, "w").write(L)
    print("wrote", out, len(L), "bytes")

if __name__ == "__main__":
    main(sys.argv[1] if len(sys.argv) > 1 else "sequential_preLN__spectral_gfnet__mixer_token_mlp__prompt.s")
```

```python
import sys, numpy as np
from asmlib import Asm

S, D, F = 2048, 448, 1792
WS_T, WS_TP, WS_H, WS_HT, WS_UT, WS_MAX, WS_SCALE = 0x0, 0x200000, 0x400000, 0x600000, 0x800000, 0xA00000, 0xA01000
OOB = 0x40000000

def kappa_to_k(kap):
    t, col = kap >> 4, kap & 15
    k = 2*(16*t + col) if t < 8 else 2*(16*(t-8) + col) + 1
    return k if k <= 224 else -1

def f16bits(x): return np.asarray(x, dtype=np.float64).astype(np.float16).view(np.uint16)

def table_A():
    out = np.zeros((15, 2, 7, 64, 8), np.float64)
    for t in range(15):
        for lane in range(64):
            g, col = lane >> 4, lane & 15
            k = kappa_to_k(16*t + col)
            if k < 0: continue
            for ks in range(7):
                d = 32*ks + 8*g + np.arange(8)
                ang = 2*np.pi*((d*k) % 448)/448
                out[t, 0, ks, lane] = np.cos(ang)/64
                out[t, 1, ks, lane] = -np.sin(ang)/64
    return f16bits(out).tobytes()

def table_B():
    out = np.zeros((4, 4, 64, 4, 2), np.float64)
    for mt in range(4):
        for ks in range(4):
            for lane in range(64):
                g, row = lane >> 4, lane & 15
                m = 16*mt + row
                n = 16*ks + 4*g + np.arange(4)
                ang = 2*np.pi*((m*n) % 64)/64
                out[mt, ks, lane, :, 0] = np.cos(ang)/8
                out[mt, ks, lane, :, 1] = np.sin(ang)/8
    return f16bits(out).tobytes()

def table_C():
    f28 = np.zeros((2, 2, 2, 64, 4, 2), np.float64)
    for ks in range(2):
        for dt in range(2):
            for lane in range(64):
                g, col = lane >> 4, lane & 15
                d2 = 16*dt + col
                if d2 >= 28: continue
                for r in range(4):
                    k2 = 16*ks + 4*g + r
                    if k2 >= 28: continue
                    ang = 2*np.pi*((k2*d2) % 28)/28
                    c, s = np.cos(ang)/4, np.sin(ang)/4
                    f28[ks, dt, 0, lane, r] = (c, -s)
                    f28[ks, dt, 1, lane, r] = (s, c)
    tw = np.zeros((2, 2, 64, 4), np.float32)
    for dt in range(2):
        for lane in range(64):
            g, col = lane >> 4, lane & 15
            d2 = 16*dt + col
            for r in range(4):
                k1 = 4*g + r
                ang = 2*np.pi*((k1*d2) % 448)/448
                tw[dt, 0, lane, r] = np.cos(ang); tw[dt, 1, lane, r] = np.sin(ang)
    f16 = np.zeros((2, 64, 4, 2), np.float64)
    for lane in range(64):
        g, col = lane >> 4, lane & 15
        for r in range(4):
            k1 = 4*g + r
            ang = 2*np.pi*((k1*col) % 16)/16
            c, s = np.cos(ang)/4, np.sin(ang)/4
            f16[0, lane, r] = (c, -s)
            f16[1, lane, r] = (s, c)
    return f16bits(f28).tobytes() + tw.tobytes() + f16bits(f16).tobytes()

def emit_table(name, data):
    q = np.frombuffer(data, dtype=np.uint64)
    L = [f".p2align 8", f".type {name},@object", f"{name}:"]
    for i in range(0, len(q), 8):
        L.append(".quad " + ",".join(("0x%x" % v) if v else "0" for v in q[i:i+8]))
    L.append(f".size {name}, {len(data)}")
    return "\n".join(L) + "\n"

def srd(A, d, lo, hi, nbytes, off=0):
    if off:
        A(f"s_add_u32 s{d}, s{lo}, {off:#x}")
        A(f"s_addc_u32 s{d+1}, s{hi}, 0")
        A(f"s_and_b32 s{d+1}, s{d+1}, 0xffff")
    else:
        A(f"s_mov_b32 s{d}, s{lo}")
        A(f"s_and_b32 s{d+1}, s{hi}, 0xffff")
    A(f"s_mov_b32 s{d+2}, {nbytes:#x}")
    A(f"s_mov_b32 s{d+3}, 0x20000")

def srd_tbl(A, d, name, nbytes):
    A(f"s_getpc_b64 s[{d}:{d+1}]")
    A(f"s_add_u32 s{d}, s{d}, {name}@rel32@lo+4")
    A(f"s_addc_u32 s{d+1}, s{d+1}, {name}@rel32@hi+12")
    A(f"s_and_b32 s{d+1}, s{d+1}, 0xffff")
    A(f"s_mov_b32 s{d+2}, {nbytes:#x}")
    A(f"s_mov_b32 s{d+3}, 0x20000")

def v2(r): return f"v[{r}:{r+1}]"
def v4(r): return f"v[{r}:{r+3}]"

STAMP = False
KIDX = {"kA_kernel": 0, "kB_kernel": 1, "kC_kernel": 2, "kD_kernel": 3, "kE_kernel": 4}
def head(A, name, nwg):
    A(f".globl {name}\n.p2align 8\n.type {name},@function\n{name}:")
    A(f"s_cmp_ge_u32 s2, {nwg}\ns_cbranch_scc1 L_{name}_end2")
    if STAMP:
        A("s_memrealtime s[98:99]\ns_memtime s[76:77]\nv_mov_b32 v255, v0")
        for i in range(1, 7): A(f"s_mov_b32 s{76+2*i}, 0")

def mark(A, i):
    if STAMP: A(f"s_memtime s[{76+2*i}:{77+2*i}]")

def endp(A, name):
    A(f"s_branch L_{name}_end")

def tail(A, name):
    A(f"L_{name}_end:")
    if STAMP:
        mark(A, 6)
        A("s_waitcnt vmcnt(0) lgkmcnt(0)")
        A("s_memrealtime s[100:101]\ns_memtime s[90:91]\ns_load_dwordx2 s[96:97], s[0:1], 80\ns_waitcnt lgkmcnt(0)")
        A(f"s_add_u32 s92, s96, {0xB00000 + KIDX[name]*0x40000:#x}\ns_addc_u32 s93, s97, 0\ns_and_b32 s93, s93, 0xffff\ns_mov_b32 s94, 0x40000\ns_mov_b32 s95, 0x20000")
        A("s_mov_b64 exec, 1")
        A("v_lshrrev_b32 v255, 6, v255\nv_lshlrev_b32 v255, 6, v255\ns_lshl_b32 s96, s2, 10")
        A("v_mov_b32 v240, s98\nv_mov_b32 v241, s100")
        for i in range(8): A(f"v_mov_b32 v{244+i}, s{76+2*i}")
        A("buffer_store_dwordx2 v[240:241], v255, s[92:95], s96 offen")
        A("buffer_store_dwordx4 v[244:247], v255, s[92:95], s96 offen offset:16")
        A("buffer_store_dwordx4 v[248:251], v255, s[92:95], s96 offen offset:32")
    A(f"L_{name}_end2:\ns_endpgm")

def desc(name, vgpr, sgpr=102, accum=None):
    if STAMP: vgpr = 256
    accum = accum or ((vgpr + 3)//4*4)
    return f""".p2align 6
.amdhsa_kernel {name}
  .amdhsa_next_free_vgpr {vgpr}
  .amdhsa_next_free_sgpr {sgpr}
  .amdhsa_accum_offset {accum}
  .amdhsa_group_segment_fixed_size 0
  .amdhsa_kernarg_size 88
  .amdhsa_user_sgpr_count 2
  .amdhsa_user_sgpr_kernarg_segment_ptr 1
  .amdhsa_system_sgpr_workgroup_id_x 1
  .amdhsa_float_denorm_mode_32 3
  .amdhsa_float_denorm_mode_16_64 3
.end_amdhsa_kernel
"""

def reduce_rows(A, regs, tmps, op="v_add_f32", full=False):
    for sh in (8, 4, 2, 1):
        for r in regs:
            A(f"{op}_dpp v{r}, v{r}, v{r} row_ror:{sh} row_mask:0xf bank_mask:0xf")
    for r, t in zip(regs, tmps): A(f"v_mov_b32 v{t}, v{r}")
    for r, t in zip(regs, tmps): A(f"v_permlane16_swap_b32 v{r}, v{t}")
    for r, t in zip(regs, tmps): A(f"{op} v{r}, v{r}, v{t}")
    if full:
        for r, t in zip(regs, tmps): A(f"v_mov_b32 v{t}, v{r}")
        for r, t in zip(regs, tmps): A(f"v_permlane32_swap_b32 v{r}, v{t}")
        for r, t in zip(regs, tmps): A(f"{op} v{r}, v{r}, v{t}")

def bf_round_scalar(A, dst, src):
    A(f"v_cvt_pk_bf16_f32 v{dst}, v{src}, v{src}")
    A(f"v_lshlrev_b32 v{dst}, 16, v{dst}")

def bf_round_arr(A, base, n, pk):
    for i in range(n//2):
        A(f"v_cvt_pk_bf16_f32 v{pk+i}, v{base+2*i}, v{base+2*i+1}")
    for i in range(n//2):
        A(f"v_lshlrev_b32 v{base+2*i}, 16, v{pk+i}")
        A(f"v_and_b32 v{base+2*i+1}, 0xffff0000, v{pk+i}")

def ln_stats_tail(A, rows):
    for R in rows: A(f"v_sub_f32 v{R['t0']}, v{R['mu']}, v{R['m']}")
    for R in rows: A(f"v_mul_f32 v{R['ss']}, s60, v{R['ss']}")
    for R in rows: A(f"v_fma_f32 v{R['ss']}, -v{R['t0']}, v{R['t0']}, v{R['ss']}")
    for R in rows: A(f"v_max_f32 v{R['ss']}, 0, v{R['ss']}")
    for R in rows: bf_round_scalar(A, R['ss'], R['ss'])
    for R in rows: A(f"v_add_f32 v{R['ss']}, s61, v{R['ss']}")
    for R in rows: bf_round_scalar(A, R['ss'], R['ss'])
    for R in rows: A(f"v_sqrt_f32 v{R['ss']}, v{R['ss']}")
    for R in rows: bf_round_scalar(A, R['ss'], R['ss'])
    for R in rows: A(f"v_rcp_f32 v{R['ss']}, v{R['ss']}")

LDS_A_PITCH = 480
def kernel_A():
    A = Asm(); name = "kA_kernel"
    head(A, name, 256)
    A("s_load_dwordx4 s[4:7], s[0:1], 0\ns_load_dwordx2 s[8:9], s[0:1], 16\ns_load_dwordx2 s[10:11], s[0:1], 80")
    A("s_and_b32 s36, s2, 63")
    A("s_lshr_b32 s37, s2, 6")
    A("v_lshrrev_b32 v2, 6, v0")
    A("v_and_b32 v1, 63, v0")
    A("v_readfirstlane_b32 s38, v2")
    srd_tbl(A, 16, "tblA", 15*2*7*1024)
    A("s_mov_b32 s60, 0x3b124925")
    A("s_mov_b32 s61, 0x3727c5ac")
    A("s_lshl_b32 s39, s37, 2\ns_add_u32 s39, s39, s38")
    A("v_and_b32 v3, 31, v1")
    A("v_lshrrev_b32 v4, 5, v1")
    A("v_mul_u32_u24 v5, 57344, v4")
    A("v_lshl_add_u32 v5, v3, 4, v5")
    A("v_cmp_gt_u32 vcc, 28, v3")
    A(f"v_mov_b32 v6, {OOB:#x}")
    A("v_cndmask_b32 v5, v6, v5, vcc")
    A("s_mov_b64 s[62:63], vcc")
    A("s_lshl_b32 s40, s38, 8\ns_add_u32 s40, s40, s36\ns_mul_i32 s40, s40, 896")
    A("s_add_u32 s41, s40, 114688")
    A("v_lshlrev_b32 v7, 4, v1")
    A("s_waitcnt lgkmcnt(0)")
    mark(A, 1)
    srd(A, 12, 4, 5, S*D*2)
    A("buffer_load_dwordx4 v[8:11], v5, s[12:15], s40 offen")
    A("buffer_load_dwordx4 v[12:15], v5, s[12:15], s40 offen offset:448")
    A("buffer_load_dwordx4 v[16:19], v5, s[12:15], s41 offen")
    A("buffer_load_dwordx4 v[20:23], v5, s[12:15], s41 offen offset:448")
    srd(A, 20, 10, 11, 0x200000, WS_T)
    srd(A, 24, 6, 7, S*225*2)
    srd(A, 28, 8, 9, S*225*2)
    srd(A, 32, 10, 11, 1024, WS_MAX)
    A("s_cmp_lt_u32 s37, 2\ns_cselect_b32 s64, 1.0, -1.0\ns_mov_b32 s65, s64")
    A("s_cmp_ge_u32 s38, 4\ns_cbranch_scc1 L_A_aux1")
    A("s_mul_i32 s42, s39, 14336")
    for f in range(14):
        A(f"buffer_load_dwordx4 {v4(64+4*f)}, v7, s[16:19], s42 offen offset:{(f%4)*1024}")
        if f % 4 == 3: A("s_add_u32 s42, s42, 4096")
    A("v_and_b32 v56, 15, v1")
    A("v_lshrrev_b32 v57, 4, v1")
    A("v_cvt_f32_u32 v58, v56")
    A("v_add_f32 v59, 16.0, v58") if False else A("v_add_f32 v59, 0x41800000, v58")
    A("v_lshlrev_b32 v60, 8, v57")
    A("v_add_u32 v60, s36, v60")
    A("v_cvt_f32_u32 v60, v60")
    A("v_mul_f32 v60, 0x3a000000, v60")
    for nt in range(2):
        for jp in range(4):
            for h in range(2):
                j = 2*jp + h
                off = (64*(j & 3) + 1024*(j >> 2))/2048.0
                offb = int(np.float32(off).view(np.uint32))
                A(f"v_add_f32 v61, {offb:#x}, v60")
                A(f"v_mul_f32 v61, v{58+nt}, v61")
                A(f"v_cos_f32 v{208+h}, v61")
                A(f"v_sin_f32 v{210+h}, v61")
            A(f"v_cvt_pk_f16_f32 v{192+4*nt+jp}, v208, v209")
            A(f"v_cvt_pk_f16_f32 v{200+4*nt+jp}, v210, v211")
    A("s_waitcnt vmcnt(14)")
    A("s_branch L_A_ln")
    A("L_A_aux1:")
    A("s_cmp_lg_u32 s38, 4\ns_cbranch_scc1 L_A_aux2")
    A("s_lshl_b32 s42, s2, 12")
    for m in range(4):
        A(f"buffer_load_dwordx4 {v4(64+4*m)}, v7, s[24:27], s42 offen offset:{m*1024}")
        A(f"buffer_load_dwordx4 {v4(80+4*m)}, v7, s[28:31], s42 offen offset:{m*1024}")
    A("s_waitcnt vmcnt(8)")
    A("s_branch L_A_ln")
    A("L_A_aux2:")
    A("s_waitcnt vmcnt(0)")
    A("L_A_ln:")
    mark(A, 2)
    X = [24, 40]; RAW = [8, 16]
    st = [dict(mu=212, m=214, ss=216, t0=218, acc=220), dict(mu=213, m=222, ss=224, t0=219, acc=226)]
    for p in range(2):
        for k in range(8):
            A(f"v_lshlrev_b32 v{X[p]+2*k}, 16, v{RAW[p]+k}")
            A(f"v_and_b32 v{X[p]+2*k+1}, 0xffff0000, v{RAW[p]+k}")
    for p in range(2):
        a = st[p]['acc']
        A(f"v_pk_add_f32 {v2(a)}, {v2(X[p])}, {v2(X[p]+2)}")
    for k in range(2, 8):
        for p in range(2):
            a = st[p]['acc']
            A(f"v_pk_add_f32 {v2(a)}, {v2(a)}, {v2(X[p]+2*k)}")
    for p in range(2): A(f"v_add_f32 v{st[p]['mu']}, v{st[p]['acc']}, v{st[p]['acc']+1}")
    reduce_rows(A, [s_['mu'] for s_ in st], [s_['t0'] for s_ in st])
    for p in range(2): A(f"v_mul_f32 v{st[p]['mu']}, s60, v{st[p]['mu']}")
    for p in range(2): bf_round_scalar(A, st[p]['m'], st[p]['mu'])
    for k in range(8):
        for p in range(2):
            A(f"v_pk_add_f32 {v2(X[p]+2*k)}, {v2(X[p]+2*k)}, {v2(st[p]['m'])} op_sel_hi:[1,0] neg_lo:[0,1] neg_hi:[0,1]")
    for p in range(2):
        A(f"v_pk_mul_f32 {v2(st[p]['acc'])}, {v2(X[p])}, {v2(X[p])}")
    for k in range(1, 8):
        for p in range(2):
            A(f"v_pk_fma_f32 {v2(st[p]['acc'])}, {v2(X[p]+2*k)}, {v2(X[p]+2*k)}, {v2(st[p]['acc'])}")
    for p in range(2): A(f"v_add_f32 v{st[p]['ss']}, v{st[p]['acc']}, v{st[p]['acc']+1}")
    for p in range(2): A(f"v_cndmask_b32 v{st[p]['ss']}, 0, v{st[p]['ss']}, s[62:63]")
    reduce_rows(A, [s_['ss'] for s_ in st], [s_['t0'] for s_ in st])
    ln_stats_tail(A, st)
    for p in range(2): bf_round_arr(A, X[p], 16, RAW[p])
    for k in range(8):
        for p in range(2):
            A(f"v_pk_mul_f32 {v2(X[p]+2*k)}, {v2(X[p]+2*k)}, {v2(st[p]['ss'])} op_sel_hi:[1,0]")
    for p in range(2): bf_round_arr(A, X[p], 16, RAW[p])
    for k in range(4):
        for p in range(2):
            A(f"v_pk_fma_f32 {v2(X[p]+2*k)}, {v2(X[p]+8+2*k)}, s[64:65], {v2(X[p]+2*k)}")
    for k in range(4):
        for p in range(2):
            A(f"v_cvt_pk_f16_f32 v{RAW[p]+k}, v{X[p]+2*k}, v{X[p]+2*k+1}")
    A(f"v_mul_u32_u24 v5, {LDS_A_PITCH}, v4")
    A("v_lshl_add_u32 v5, v3, 4, v5")
    A(f"s_mul_i32 s43, s38, {4*LDS_A_PITCH}")
    A("v_add_u32 v5, s43, v5")
    A("s_mov_b64 exec, s[62:63]")
    A(f"ds_write_b128 v5, {v4(RAW[0])}")
    A(f"ds_write_b128 v5, {v4(RAW[1])} offset:{2*LDS_A_PITCH}")
    A("s_mov_b64 exec, -1")
    mark(A, 3)
    A("s_waitcnt lgkmcnt(0)")
    A("s_barrier")
    mark(A, 4)
    A("s_waitcnt lgkmcnt(0)")
    A("s_cmp_ge_u32 s38, 4\ns_cbranch_scc1 L_A_aux3")
    A(f"s_cmp_ge_u32 s39, 15\ns_cbranch_scc1 L_{name}_end")
    A(f"v_mul_u32_u24 v5, {LDS_A_PITCH}, v56")
    A("v_lshl_add_u32 v5, v57, 4, v5")
    for ks in range(7):
        for mt in range(2):
            A(f"ds_read_b128 {v4(120+4*(2*ks+mt))}, v5 offset:{mt*16*LDS_A_PITCH + ks*64}")
    A("v_lshlrev_b32 v6, 16, v56")
    A("v_lshl_add_u32 v6, v57, 4, v6")
    A("s_lshl_b32 s44, s36, 10\ns_lshl_b32 s45, s39, 6\ns_add_u32 s44, s44, s45")
    A("s_add_u32 s45, s44, 0x100000")
    A("s_waitcnt vmcnt(0)")
    if STAMP:
        A("s_waitcnt lgkmcnt(0)"); mark(A, 5); A("s_waitcnt lgkmcnt(0)")
    acc = {(0, 0): 176, (0, 1): 180, (1, 0): 184, (1, 1): 188}
    for ks in range(7):
        A(f"s_waitcnt lgkmcnt({12-2*ks})")
        for mt in range(2):
            for ri in range(2):
                a = acc[(ri, mt)]
                c = "0" if ks == 0 else v4(a)
                A(f"v_mfma_f32_16x16x32_f16 {v4(a)}, {v4(120+4*(2*ks+mt))}, {v4(64+4*(7*ri+ks))}, {c}")
    for mt in range(2):
        for h in range(2):
            r0 = acc[(0, mt)] + 2*h; i0 = acc[(1, mt)] + 2*h
            A(f"v_cvt_pk_f16_f32 v{8+2*mt+h}, v{r0}, v{r0+1}")
            A(f"v_cvt_pk_f16_f32 v{12+2*mt+h}, v{i0}, v{i0+1}")
            A(f"v_cvt_pk_f16_f32 v{16+2*mt+h}, -v{r0}, -v{r0+1}")
    for nt in range(2):
        A(f"v_mfma_f32_16x16x32_f16 {v4(24+8*nt)}, v[8:11], {v4(192+4*nt)}, 0")
        A(f"v_mfma_f32_16x16x32_f16 {v4(28+8*nt)}, v[12:15], {v4(192+4*nt)}, 0")
    for nt in range(2):
        A(f"v_mfma_f32_16x16x32_f16 {v4(24+8*nt)}, v[12:15], {v4(200+4*nt)}, {v4(24+8*nt)}")
        A(f"v_mfma_f32_16x16x32_f16 {v4(28+8*nt)}, v[16:19], {v4(200+4*nt)}, {v4(28+8*nt)}")
    for nt in range(2):
        for r in range(4):
            A(f"v_cvt_pk_f16_f32 v{40+4*nt+r}, v{24+8*nt+r}, v{28+8*nt+r}")
        A(f"buffer_store_dwordx4 {v4(40+4*nt)}, v6, s[20:23], s{44+nt} offen")
    endp(A, name)
    A("L_A_aux3:")
    A(f"s_cmp_lg_u32 s38, 4\ns_cbranch_scc1 L_{name}_end")
    A("s_waitcnt vmcnt(0)")
    A("s_mov_b32 s46, 0x7fff7fff")
    for k in range(32): A(f"v_and_b32 v{64+k}, s46, v{64+k}")
    for k in range(1, 32): A(f"v_pk_max_u16 v64, v64, v{64+k}")
    A("v_lshrrev_b32 v65, 16, v64\nv_and_b32 v64, 0xffff, v64\nv_max_u32 v64, v64, v65")
    reduce_rows(A, [64], [65], op="v_max_u32", full=True)
    A("s_lshl_b32 s47, s2, 2")
    A("v_mov_b32 v66, 0")
    A("s_mov_b64 exec, 1")
    A("buffer_store_dword v64, v66, s[32:35], s47 offen")
    tail(A, name)
    return A.finalize(), desc(name, 228)

def kernel_B():
    A = Asm(); name = "kB_kernel"
    head(A, name, 256)
    A("s_load_dwordx4 s[4:7], s[0:1], 8\ns_load_dwordx2 s[10:11], s[0:1], 80")
    A("s_and_b32 s36, s2, 31")
    A("s_lshr_b32 s37, s2, 5")
    A("v_lshrrev_b32 v2, 6, v0")
    A("v_and_b32 v1, 63, v0")
    A("v_readfirstlane_b32 s38, v2")
    srd_tbl(A, 16, "tblB", 16384)
    A("s_lshl_b32 s39, s37, 1\ns_add_u32 s39, s39, s38")
    A(f"s_cmp_ge_u32 s39, 15\ns_cbranch_scc1 L_{name}_end")
    A("v_and_b32 v2, 15, v1")
    A("v_lshrrev_b32 v3, 4, v1")
    A("v_lshlrev_b32 v4, 12, v3")
    A("v_lshl_add_u32 v4, v2, 2, v4")
    A("v_lshlrev_b32 v7, 4, v1")
    A("s_lshl_b32 s40, s36, 16\ns_lshl_b32 s41, s39, 6\ns_add_u32 s40, s40, s41")
    A("s_add_u32 s41, s40, 16384\ns_add_u32 s42, s40, 32768\ns_add_u32 s43, s40, 49152")
    A("s_waitcnt lgkmcnt(0)")
    mark(A, 1)
    srd(A, 20, 10, 11, 0x200000, WS_T)
    for ks in range(4):
        for r in range(4):
            A(f"buffer_load_dword v{16+4*ks+r}, v4, s[20:23], s{40+ks} offen offset:{r*1024}")
    srd(A, 32, 10, 11, 1024, WS_MAX)
    A("buffer_load_dwordx4 v[8:11], v7, s[32:35], 0 offen")
    A("s_mov_b32 s44, 0")
    for mt in range(4):
        for ks in range(4):
            A(f"buffer_load_dwordx4 {v4(64+16*mt+4*ks)}, v7, s[16:19], s44 offen offset:{ks*1024}")
        if mt < 3: A("s_add_u32 s44, s44, 4096")
    srd(A, 24, 4, 5, S*225*2)
    srd(A, 28, 6, 7, S*225*2)
    A("s_and_b32 s45, s39, 7\ns_lshl_b32 s45, s45, 5\ns_lshr_b32 s46, s39, 3\ns_add_u32 s45, s45, s46")
    A("v_lshl_add_u32 v5, v2, 1, s45")
    A("v_lshlrev_b32 v6, 7, v3")
    A("v_add_u32 v6, s36, v6")
    A("v_mul_u32_u24 v6, 450, v6")
    A("v_lshl_add_u32 v6, v5, 1, v6")
    A("v_cmp_ge_u32 vcc, 224, v5")
    A(f"v_mov_b32 v12, {OOB:#x}")
    A("v_cndmask_b32 v6, v12, v6, vcc")
    for i in range(32): A(f"v_mov_b32 v{128+i}, 0")
    for mt in range(4):
        for r in range(4):
            A(f"s_mov_b32 s47, {(16*mt+r)*14400}")
            A(f"buffer_load_short_d16_hi v{128+4*mt+r}, v6, s[24:27], s47 offen")
            A(f"buffer_load_short_d16_hi v{144+4*mt+r}, v6, s[28:31], s47 offen")
    srd(A, 20+28, 10, 11, 0x200000, WS_TP)
    srd(A, 52, 10, 11, 64, WS_SCALE)
    A("v_cmp_eq_u32 vcc, 0, v5")
    A("v_cmp_eq_u32 s[56:57], 0xe0, v5") if False else None
    A("s_movk_i32 s58, 224")
    A("v_cmp_eq_u32 s[56:57], s58, v5")
    A("s_or_b64 vcc, vcc, s[56:57]")
    A("v_mov_b32 v13, 1.0")
    A("v_cndmask_b32 v13, v13, 0.5, vcc") if False else A("v_mov_b32 v14, 0.5\nv_cndmask_b32 v13, v13, v14, vcc")
    A("v_lshlrev_b32 v15, 15, v2")
    A("v_lshl_add_u32 v15, v3, 4, v15")
    A("s_lshl_b32 s59, s36, 10\ns_lshl_b32 s60, s39, 6\ns_add_u32 s59, s59, s60")
    A("s_mov_b32 s61, 0xbc003c00")
    mark(A, 2)
    A("s_waitcnt vmcnt(49)")
    mark(A, 3)
    for i in range(16):
        A(f"v_pk_mul_f16 v{32+i}, v{16+i}, s61 op_sel:[1,0] op_sel_hi:[0,1]")
    A("s_waitcnt vmcnt(48)")
    A("v_max3_u32 v8, v8, v9, v10\nv_max_u32 v8, v8, v11")
    reduce_rows(A, [8], [9], op="v_max_u32", full=True)
    A("v_lshrrev_b32 v8, 7, v8")
    A("v_max_u32 v8, 8, v8")
    A("v_min_u32 v8, 250, v8") if False else A("v_mov_b32 v9, 250\nv_min_u32 v8, v9, v8")
    A("v_sub_u32 v9, 252, v8") if False else A("v_mov_b32 v9, 252\nv_sub_u32 v9, v9, v8")
    A("v_lshlrev_b32 v9, 23, v9")
    A("v_mul_f32 v12, v9, v13")
    A("v_add_u32 v8, 2, v8\nv_lshlrev_b32 v8, 23, v8")
    A("v_mul_f32 v8, 0x3d924925, v8")
    A("v_mov_b32 v9, 0")
    for mt in range(4):
        A(f"s_waitcnt vmcnt({32+12-4*mt})")
        for ks in range(4):
            m = v4(64+16*mt+4*ks)
            A(f"v_mfma_f32_16x16x32_f16 {v4(160+4*mt)}, {m}, {v4(16+4*ks)}, {'0' if ks==0 else v4(160+4*mt)}")
            A(f"v_mfma_f32_16x16x32_f16 {v4(176+4*mt)}, {m}, {v4(32+4*ks)}, {'0' if ks==0 else v4(176+4*mt)}")
    A("s_or_b32 s62, s2, s38\ns_cmp_lg_u32 s62, 0\ns_cbranch_scc1 L_B_noscale")
    A("s_mov_b64 exec, 1")
    A("buffer_store_dword v8, v9, s[52:55], 0 offen")
    A("s_mov_b64 exec, -1")
    A("L_B_noscale:")
    mark(A, 4)
    A("s_waitcnt vmcnt(0)")
    mark(A, 5)
    for i in range(16):
        A(f"v_pk_mul_f32 {v2(128+2*i)}, {v2(128+2*i)}, v[12:13] op_sel_hi:[1,0]")
    for mt in range(4):
        for h in range(2):
            xr = 160+4*mt+2*h; xi = 176+4*mt+2*h; wr = 128+4*mt+2*h; wi = 144+4*mt+2*h
            A(f"v_pk_mul_f32 v[192:193], {v2(xr)}, {v2(wr)}")
            A(f"v_pk_mul_f32 v[194:195], {v2(xr)}, {v2(wi)}")
            A(f"v_pk_fma_f32 v[192:193], {v2(xi)}, {v2(wi)}, v[192:193] neg_lo:[1,0,0] neg_hi:[1,0,0]")
            A(f"v_pk_fma_f32 v[194:195], {v2(xi)}, {v2(wr)}, v[194:195]")
            for e in range(2):
                A(f"v_cvt_pk_f16_f32 v{16+4*mt+2*h+e}, v{192+e}, -v{194+e}")
                A(f"v_cvt_pk_f16_f32 v{32+4*mt+2*h+e}, v{194+e}, v{192+e}")
    for nt in range(4):
        for ks in range(4):
            m = v4(64+16*nt+4*ks)
            A(f"v_mfma_f32_16x16x32_f16 {v4(200+4*nt)}, {v4(16+4*ks)}, {m}, {'0' if ks==0 else v4(200+4*nt)}")
            A(f"v_mfma_f32_16x16x32_f16 {v4(216+4*nt)}, {v4(32+4*ks)}, {m}, {'0' if ks==0 else v4(216+4*nt)}")
    for nt in range(4):
        for r in range(4):
            A(f"v_cvt_pk_f16_f32 v{232+4*nt+r}, v{200+4*nt+r}, v{216+4*nt+r}")
        A(f"buffer_store_dwordx4 {v4(232+4*nt)}, v15, s[48:51], s59 offen")
        if nt < 3: A("s_add_u32 s59, s59, 0x80000")
    tail(A, name)
    return A.finalize(), desc(name, 248)

ZP, ZPB = 160, 2560
Z_DUMMY = 4*ZPB
HX = 4*ZPB + 64
def kernel_C():
    A = Asm(); name = "kC_kernel"
    head(A, name, 256)
    A("s_load_dwordx2 s[4:5], s[0:1], 0\ns_load_dwordx2 s[10:11], s[0:1], 80")
    A("s_and_b32 s36, s2, 63")
    A("s_lshr_b32 s37, s2, 6")
    A("v_lshrrev_b32 v2, 6, v0")
    A("v_and_b32 v1, 63, v0")
    A("v_readfirstlane_b32 s38, v2")
    srd_tbl(A, 16, "tblC", 14336)
    A("s_mov_b32 s60, 0x3b124925\ns_mov_b32 s61, 0x3727c5ac")
    A("v_and_b32 v2, 15, v1")
    A("v_lshrrev_b32 v3, 4, v1")
    A("v_lshlrev_b32 v4, 12, v3")
    A("v_lshl_add_u32 v4, v2, 2, v4")
    A("v_lshlrev_b32 v7, 4, v1")
    A("s_lshl_b32 s40, s36, 15\ns_lshl_b32 s41, s38, 6\ns_add_u32 s40, s40, s41")
    A("s_add_u32 s41, s40, 16384")
    A("s_waitcnt lgkmcnt(0)")
    mark(A, 1)
    A(f"s_add_u32 s6, s10, {WS_SCALE:#x}\ns_addc_u32 s7, s11, 0")
    A("s_load_dword s62, s[6:7], 0")
    srd(A, 20, 10, 11, 0x200000, WS_TP)
    for i in range(4):
        for ks in range(2):
            for r in range(4):
                A(f"buffer_load_dword v{64+8*i+4*ks+r}, v4, s[20:23], s{40+ks} offen offset:{r*1024+i*256}")
    srd(A, 12, 4, 5, S*D*2)
    A("v_mul_u32_u24 v5, 56, v2")
    A("v_lshl_add_u32 v5, v3, 3, v5")
    A("v_add_u32 v6, 32, v5")
    A("v_cmp_gt_u32 vcc, 48, v1")
    A(f"v_mov_b32 v8, {OOB:#x}")
    A("v_cndmask_b32 v6, v8, v6, vcc")
    A("v_mov_b32 v8, 0\nv_mov_b32 v9, 1.0\nv_cndmask_b32 v9, v8, v9, vcc")
    A("s_lshl_b32 s42, s37, 9\ns_lshl_b32 s43, s38, 7\ns_add_u32 s42, s42, s43\ns_add_u32 s42, s42, s36")
    A("s_mul_i32 s43, s42, 896\ns_add_u32 s44, s43, 57344")
    A("buffer_load_dwordx2 v[96:97], v5, s[12:15], s43 offen")
    A("buffer_load_dwordx2 v[98:99], v6, s[12:15], s43 offen")
    A("buffer_load_dwordx2 v[100:101], v5, s[12:15], s44 offen")
    A("buffer_load_dwordx2 v[102:103], v6, s[12:15], s44 offen")
    A("s_mov_b32 s45, 0")
    for f in range(14):
        A(f"buffer_load_dwordx4 {v4(104+4*f)}, v7, s[16:19], s45 offen offset:{(f%4)*1024}")
        if f % 4 == 3: A("s_add_u32 s45, s45, 4096")
    srd(A, 24, 10, 11, S*D*2, WS_H)
    srd(A, 28, 10, 11, S*D*2, WS_HT)
    A("v_mov_b32 v10, 0\nv_mov_b32 v11, 0\nv_mov_b32 v12, 0\nv_mov_b32 v13, 0")
    A(f"v_mul_u32_u24 v14, {ZP}, v1")
    A("s_cmp_lg_u32 s38, 0\ns_cbranch_scc1 L_C_nz")
    A("ds_write_b128 v14, v[10:13] offset:112")
    A("L_C_nz:")
    A("v_lshrrev_b32 v10, 2, v2")
    A("v_and_b32 v11, 3, v2")
    A("v_lshlrev_b32 v10, 7, v10")
    A("s_lshl_b32 s46, s37, 9\ns_add_u32 s46, s46, s36")
    A("v_add_u32 v10, s46, v10")
    A("v_cvt_f32_u32 v10, v10")
    A("v_mul_f32 v10, 0x3a000000, v10")
    A("v_add_f32 v12, 0x3d000000, v10")
    A("v_cvt_f32_u32 v13, v11")
    A("v_and_b32 v14, 1, v11")
    A("v_cvt_f32_u32 v14, v14")
    A("v_add_f32 v15, -2.0, v13")
    A("v_mul_f32 v15, 0x3e800000, v15")
    A("v_mul_f32 v15, v14, v15")
    A("v_sub_f32 v16, 1.0, v13")
    A("v_mul_f32 v16, 0x3e800000, v16")
    A("v_sub_f32 v14, 1.0, v14")
    A("v_mul_f32 v16, v14, v16")
    A("v_lshlrev_b32 v17, 2, v3")
    A("v_cvt_f32_u32 v17, v17")
    for ks in range(2):
        for r in range(4):
            cb = int(np.float32(16*ks + r).view(np.uint32))
            A(f"v_add_f32 v18, {cb:#x}, v17")
            A("v_fma_f32 v19, v18, v10, v15")
            A("v_fma_f32 v20, v18, v12, v16")
            A("v_cos_f32 v21, v19\nv_cos_f32 v22, v20\nv_sin_f32 v23, v19\nv_sin_f32 v24, v20")
            A("v_add_f32 v21, v21, v22\nv_add_f32 v23, v23, v24")
            A(f"v_cvt_pk_f16_f32 v{160+4*ks+r}, v21, -v23")
    A(f"v_mul_u32_u24 v25, {ZPB}, v3")
    for i in range(4):
        A(f"s_add_u32 s47, s38, {4*i}")
        A("s_and_b32 s48, s47, 7\ns_lshl_b32 s48, s48, 5\ns_lshr_b32 s49, s47, 3\ns_add_u32 s48, s48, s49")
        A("v_lshl_add_u32 v26, v2, 1, s48")
        A("v_and_b32 v27, 15, v26\nv_lshrrev_b32 v28, 4, v26")
        A(f"v_mul_u32_u24 v27, {ZP}, v27")
        A("v_lshl_add_u32 v27, v28, 2, v27")
        A(f"v_add_u32 v{168+2*i}, v25, v27")
        A("v_sub_u32 v29, 0x1c0, v26")
        A("v_and_b32 v27, 15, v29\nv_lshrrev_b32 v28, 4, v29")
        A(f"v_mul_u32_u24 v27, {ZP}, v27")
        A("v_lshl_add_u32 v27, v28, 2, v27")
        A(f"v_add_u32 v{169+2*i}, v25, v27")
        if i in (0, 1, 3):
            A(f"v_mov_b32 v27, {Z_DUMMY}")
            A("s_movk_i32 s50, 224")
            A("v_cmp_lt_u32 vcc, s50, v26")
            A(f"v_cndmask_b32 v{168+2*i}, v{168+2*i}, v27, vcc")
            A("v_cmp_le_u32 vcc, s50, v26")
            A(f"v_cmp_eq_u32 s[{64+2*i}:{65+2*i}], 0, v26")
            A(f"s_or_b64 s[{64+2*i}:{65+2*i}], s[{64+2*i}:{65+2*i}], vcc")
            A(f"v_cndmask_b32 v{169+2*i}, v{169+2*i}, v27, s[{64+2*i}:{65+2*i}]")
    mark(A, 2)
    for i in range(4):
        A(f"s_waitcnt vmcnt({18 + 8*(3-i)})")
        A(f"v_mfma_f32_16x16x32_f16 {v4(32+4*i)}, v[160:163], {v4(64+8*i)}, 0")
        A(f"v_mfma_f32_16x16x32_f16 {v4(32+4*i)}, v[164:167], {v4(68+8*i)}, {v4(32+4*i)}")
    for i in range(4):
        a = 32+4*i
        if i in (0, 1):
            A(f"v_cndmask_b32 v26, 0, v{a+2}, s[{64+2*i}:{65+2*i}]")
            A(f"v_cndmask_b32 v27, 0, v{a+3}, s[{64+2*i}:{65+2*i}]")
            A(f"v_add_f32 v{a}, v{a}, v26\nv_add_f32 v{a+1}, v{a+1}, v27")
        A(f"v_cvt_pk_f16_f32 v{48+2*i}, v{a}, v{a+1}")
        A(f"v_cvt_pk_f16_f32 v{49+2*i}, v{a+2}, v{a+3}")
        A(f"ds_write_b32 v{168+2*i}, v{48+2*i}")
        A(f"ds_write_b32 v{169+2*i}, v{49+2*i}")
    A(f"v_mul_u32_u24 v26, {ZP}, v2")
    A("v_lshl_add_u32 v26, v3, 4, v26")
    A(f"s_mul_i32 s47, s38, {ZPB}")
    A("v_add_u32 v26, s47, v26")
    A("s_waitcnt lgkmcnt(0)")
    A("s_barrier")
    mark(A, 3)
    A("ds_read_b128 v[32:35], v26\nds_read_b128 v[36:39], v26 offset:64")
    A("s_waitcnt vmcnt(0) lgkmcnt(0)")
    mark(A, 4)
    for ks in range(2):
        for dt in range(2):
            for ri in range(2):
                a = 40+8*dt+4*ri
                A(f"v_mfma_f32_16x16x32_f16 {v4(a)}, {v4(32+4*ks)}, {v4(104+4*(4*ks+2*dt+ri))}, {'0' if ks==0 else v4(a)}")
    for row in range(2):
        for k in range(4):
            A(f"v_lshlrev_b32 v{64+8*row+2*k}, 16, v{96+4*row+k}")
            A(f"v_and_b32 v{65+8*row+2*k}, 0xffff0000, v{96+4*row+k}")
    for dt in range(2):
        for h in range(2):
            gr = 40+8*dt+2*h; gi = 44+8*dt+2*h; tc = 136+8*dt+2*h; ts = 140+8*dt+2*h
            A(f"v_pk_mul_f32 v[56:57], {v2(gr)}, {v2(tc)}")
            A(f"v_pk_mul_f32 v[58:59], {v2(gr)}, {v2(ts)}")
            A(f"v_pk_fma_f32 v[56:57], {v2(gi)}, {v2(ts)}, v[56:57] neg_lo:[1,0,0] neg_hi:[1,0,0]")
            A(f"v_pk_fma_f32 v[58:59], {v2(gi)}, {v2(tc)}, v[58:59]")
            for e in range(2):
                A(f"v_cvt_pk_f16_f32 v{32+4*dt+2*h+e}, v{56+e}, v{58+e}")
    for dt in range(2):
        for ri in range(2):
            A(f"v_mfma_f32_16x16x32_f16 {v4(80+8*ri+4*dt)}, {v4(32+4*dt)}, {v4(152+4*ri)}, 0")
    A("s_mov_b32 s63, s62")
    Z = [80, 88]; X = [64, 72]; PK = [96, 100]
    for k in range(4):
        for row in range(2):
            A(f"v_pk_mul_f32 {v2(Z[row]+2*k)}, {v2(Z[row]+2*k)}, s[62:63]")
    for row in range(2): bf_round_arr(A, Z[row], 8, PK[row])
    for k in range(4):
        for row in range(2):
            A(f"v_pk_add_f32 {v2(X[row]+2*k)}, {v2(X[row]+2*k)}, {v2(Z[row]+2*k)}")
    for row in range(2): bf_round_arr(A, X[row], 8, PK[row])
    A("buffer_store_dwordx2 v[96:97], v5, s[24:27], s43 offen")
    A("buffer_store_dwordx2 v[98:99], v6, s[24:27], s43 offen")
    A("buffer_store_dwordx2 v[100:101], v5, s[24:27], s44 offen")
    A("buffer_store_dwordx2 v[102:103], v6, s[24:27], s44 offen")
    PK = [104, 108]
    st = [dict(mu=112, m=114, ss=116, t0=118, acc=120, acc2=122), dict(mu=113, m=124, ss=126, t0=119, acc=128, acc2=130)]
    for it in range(2):
        for row in range(2):
            R = st[row]; x = X[row]
            A(f"v_pk_add_f32 {v2(R['acc'])}, {v2(x)}, {v2(x+2)}")
            A(f"v_pk_add_f32 {v2(R['acc2'])}, {v2(x+4)}, {v2(x+6)}")
        for row in range(2):
            R = st[row]
            A(f"v_add_f32 v{R['acc']}, v{R['acc']}, v{R['acc']+1}")
            A(f"v_add_f32 v{R['acc2']}, v{R['acc2']}, v{R['acc2']+1}")
        for row in range(2):
            R = st[row]
            A(f"v_fma_f32 v{R['mu']}, v{R['acc2']}, v9, v{R['acc']}")
        reduce_rows(A, [s_['mu'] for s_ in st], [s_['t0'] for s_ in st], full=True)
        for R in st: A(f"v_mul_f32 v{R['mu']}, s60, v{R['mu']}")
        for R in st: bf_round_scalar(A, R['m'], R['mu'])
        for k in range(4):
            for row in range(2):
                A(f"v_pk_add_f32 {v2(X[row]+2*k)}, {v2(X[row]+2*k)}, {v2(st[row]['m'])} op_sel_hi:[1,0] neg_lo:[0,1] neg_hi:[0,1]")
        for row in range(2):
            R = st[row]; x = X[row]
            A(f"v_pk_mul_f32 {v2(R['acc'])}, {v2(x)}, {v2(x)}")
            A(f"v_pk_mul_f32 {v2(R['acc2'])}, {v2(x+4)}, {v2(x+4)}")
        for row in range(2):
            R = st[row]; x = X[row]
            A(f"v_pk_fma_f32 {v2(R['acc'])}, {v2(x+2)}, {v2(x+2)}, {v2(R['acc'])}")
            A(f"v_pk_fma_f32 {v2(R['acc2'])}, {v2(x+6)}, {v2(x+6)}, {v2(R['acc2'])}")
        for row in range(2):
            R = st[row]
            A(f"v_add_f32 v{R['acc']}, v{R['acc']}, v{R['acc']+1}")
            A(f"v_add_f32 v{R['acc2']}, v{R['acc2']}, v{R['acc2']+1}")
        for row in range(2):
            R = st[row]
            A(f"v_fma_f32 v{R['ss']}, v{R['acc2']}, v9, v{R['acc']}")
        reduce_rows(A, [s_['ss'] for s_ in st], [s_['t0'] for s_ in st], full=True)
        ln_stats_tail(A, st)
        for row in range(2): bf_round_arr(A, X[row], 8, PK[row])
        for k in range(4):
            for row in range(2):
                A(f"v_pk_mul_f32 {v2(X[row]+2*k)}, {v2(X[row]+2*k)}, {v2(st[row]['ss'])} op_sel_hi:[1,0]")
        if it == 0:
            for row in range(2): bf_round_arr(A, X[row], 8, PK[row])
    mark(A, 5)
    for k in range(8):
        A(f"v_cvt_pk_bf16_f32 v{80+k}, v{X[0]+k}, v{X[1]+k}")
    A("v_lshlrev_b32 v26, 3, v5")
    A(f"s_lshl_b32 s47, s38, 2\ns_add_u32 s47, s47, {HX}")
    A("v_add_u32 v26, s47, v26")
    for r in range(4):
        A(f"ds_write_b32 v26, v{80+r} offset:{16*r}")
    A("s_mov_b32 exec_hi, 0xffff")
    for r in range(4):
        A(f"ds_write_b32 v26, v{84+r} offset:{256+16*r}")
    A("s_mov_b64 exec, -1")
    A("v_lshlrev_b32 v27, 4, v0")
    A("s_lshl_b32 s47, s36, 2\ns_add_u32 s47, s47, s37\ns_mul_i32 s47, s47, 7168")
    A("s_waitcnt lgkmcnt(0)")
    A("s_barrier")
    A(f"ds_read_b128 v[32:35], v27 offset:{HX}")
    A("s_cmp_ge_u32 s38, 3\ns_cbranch_scc1 L_C_w3")
    A(f"ds_read_b128 v[36:39], v27 offset:{HX+4096}")
    A("s_waitcnt lgkmcnt(0)")
    A("s_add_u32 s48, s47, 4096")
    A("buffer_store_dwordx4 v[36:39], v27, s[28:31], s48 offen")
    A("L_C_w3:")
    A("s_waitcnt lgkmcnt(0)")
    A("buffer_store_dwordx4 v[32:35], v27, s[28:31], s47 offen")
    tail(A, name)
    return A.finalize(), desc(name, 176)

def gemm(which):
    g1 = which == 1
    A = Asm(); name = "kD_kernel" if g1 else "kE_kernel"
    P = "D" if g1 else "E"
    NWG = 224 if g1 else 256
    NS = 32 if g1 else 28
    RING = 8 if g1 else 7
    WPITCH = F*2 if g1 else S*2
    WBYTES = S*F*2
    TBYTES = S*D*2 if g1 else F*D*2
    TOFF = WS_HT if g1 else WS_UT
    WSTEP = 2*WPITCH if g1 else 64*WPITCH
    head(A, name, NWG)
    if g1:
        A("s_load_dwordx4 s[4:7], s[0:1], 32")
    else:
        A("s_load_dwordx4 s[4:7], s[0:1], 48")
        A("s_load_dwordx2 s[8:9], s[0:1], 64")
    A("s_load_dwordx2 s[10:11], s[0:1], 80")
    PER = 7 if g1 else 8
    A("s_and_b32 s36, s2, 7\ns_lshr_b32 s37, s2, 3")
    A("s_and_b32 s39, s36, 1\ns_lshl_b32 s39, s39, 2\ns_and_b32 s40, s37, 3\ns_add_u32 s39, s39, s40")
    A(f"s_lshr_b32 s40, s36, 1\ns_mul_i32 s40, s40, {PER}\ns_lshr_b32 s41, s37, 2\ns_add_u32 s40, s40, s41")
    A("v_lshrrev_b32 v2, 6, v0")
    A("v_and_b32 v1, 63, v0")
    A("v_readfirstlane_b32 s38, v2")
    A("v_and_b32 v2, 15, v1")
    A("v_lshrrev_b32 v3, 4, v1")
    A("v_lshlrev_b32 v4, 4, v1")
    A("v_cmp_gt_u32 vcc, 56, v1")
    A(f"v_mov_b32 v8, {OOB:#x}")
    A("v_cndmask_b32 v4, v8, v4, vcc")
    A("v_lshrrev_b32 v8, 3, v1")
    A("v_and_b32 v9, 7, v1")
    A("v_and_b32 v10, 2, v8")
    A("s_and_b32 s41, s38, 1\ns_lshl_b32 s41, s41, 2")
    A("v_or_b32 v10, s41, v10")
    A("v_xor_b32 v9, v9, v10")
    if g1:
        A(f"s_mov_b32 s42, {64*WPITCH}")
        A("v_mul_lo_u32 v5, v8, s42")
    else:
        A("v_and_b32 v10, 3, v8\nv_lshrrev_b32 v11, 2, v8\nv_lshl_add_u32 v10, v11, 4, v10")
        A("v_lshlrev_b32 v5, 12, v10")
    A("v_lshl_add_u32 v5, v9, 4, v5")
    A("s_mul_i32 s44, s38, 7168\ns_mul_i32 s43, s39, 896\ns_add_u32 s44, s44, s43\ns_add_u32 s45, s44, 28672")
    A("s_lshl_b32 s43, s40, 7")
    if g1:
        A(f"s_mul_i32 s46, s38, {512*WPITCH}\ns_add_u32 s46, s46, s43\ns_add_u32 s47, s46, {WPITCH}")
    else:
        A(f"s_mul_i32 s46, s38, {4*WPITCH}\ns_add_u32 s46, s46, s43\ns_add_u32 s47, s46, {32*WPITCH}")
    A("s_lshl_b32 s48, s38, 10")
    A("s_lshr_b32 s49, s38, 1\ns_and_b32 s50, s38, 1")
    A("v_lshlrev_b32 v6, 10, v3")
    A("v_lshl_add_u32 v6, v2, 4, v6")
    A("s_lshl_b32 s51, s50, 9")
    A("v_add_u32 v6, s51, v6")
    A("v_add_u32 v7, 0x10000, v6")
    A("v_lshrrev_b32 v8, 2, v2")
    A("v_lshl_add_u32 v8, v3, 3, v8")
    A("v_lshlrev_b32 v8, 7, v8")
    A("v_and_b32 v9, 3, v2")
    A("v_lshl_add_u32 v8, v9, 3, v8")
    A("v_add_u32 v8, 0x2000, v8")
    A("v_lshrrev_b32 v9, 3, v2")
    A("v_and_b32 v10, 1, v3")
    A("v_lshl_or_b32 v9, v10, 1, v9")
    A("s_lshl_b32 s51, s49, 1")
    A("v_xor_b32 v10, s51, v9")
    A("v_lshl_add_u32 v12, v10, 5, v8")
    A("v_xor_b32 v10, 1, v10")
    A("v_lshl_add_u32 v13, v10, 5, v8")
    A("v_add_u32 v14, 0x10000, v12\nv_add_u32 v15, 0x10000, v13")
    A("s_waitcnt lgkmcnt(0)")
    mark(A, 1)
    srd(A, 12, 4, 5, WBYTES)
    srd(A, 16, 10, 11, TBYTES, TOFF)
    def issue(slot):
        base = slot*16384
        A(f"s_add_u32 m0, s48, {base}")
        A("buffer_load_dwordx4 v4, s[16:19], s44 offen lds")
        A(f"s_add_u32 m0, s48, {base+4096}")
        A("buffer_load_dwordx4 v4, s[16:19], s45 offen lds")
        A(f"s_add_u32 m0, s48, {base+8192}")
        A("buffer_load_dwordx4 v5, s[12:15], s46 offen lds")
        A(f"s_add_u32 m0, s48, {base+12288}")
        A("buffer_load_dwordx4 v5, s[12:15], s47 offen lds")
        A("s_add_u32 s44, s44, 57344\ns_add_u32 s45, s45, 57344")
        A(f"s_add_u32 s46, s46, s52\ns_add_u32 s47, s47, s52")
    A(f"s_mov_b32 s52, {WSTEP}")
    for sl in range(RING-1): issue(sl)
    NPRE = 0
    if g1:
        srd(A, 20, 6, 7, F*2)
        srd(A, 24, 10, 11, F*D*2, WS_UT)
        A("s_lshl_b32 s53, s40, 7\ns_lshl_b32 s54, s49, 6\ns_add_u32 s53, s53, s54")
        A("v_lshlrev_b32 v16, 3, v3")
        A("buffer_load_dwordx2 v[20:21], v16, s[20:23], s53 offen")
        A("buffer_load_dwordx2 v[22:23], v16, s[20:23], s53 offen offset:32")
        NPRE = 2
    else:
        srd(A, 20, 6, 7, S*2)
        srd(A, 24, 8, 9, S*D*2)
        srd(A, 28, 10, 11, S*D*2, WS_H)
        A("s_lshl_b32 s53, s40, 7\ns_lshl_b32 s54, s49, 6\ns_add_u32 s53, s53, s54")
        A("v_lshlrev_b32 v16, 1, v2")
        A("buffer_load_ushort v20, v16, s[20:23], s53 offen")
        A("buffer_load_ushort v21, v16, s[20:23], s53 offen offset:32")
        A("v_mul_u32_u24 v17, 896, v2")
        A("v_lshl_add_u32 v17, v3, 3, v17")
        A("s_lshl_b32 s54, s50, 6")
        A("v_add_u32 v17, s54, v17")
        A("v_add_u32 v18, 32, v17")
        A("s_lshl_b32 s54, s50, 5")
        A("v_add_u32 v19, s54, v1")
        A("v_cmp_gt_u32 vcc, 64, v19")
        A(f"v_mov_b32 v19, {OOB:#x}")
        A("v_cndmask_b32 v18, v19, v18, vcc")
        A("s_lshl_b32 s55, s40, 6\ns_lshl_b32 s54, s49, 5\ns_add_u32 s55, s55, s54\ns_mul_i32 s55, s55, 896")
        A("s_mul_i32 s54, s39, 112\ns_add_u32 s55, s55, s54\ns_add_u32 s56, s55, 14336")
        for mt in range(2):
            for nt in range(2):
                A(f"buffer_load_dwordx2 {v2(24+4*mt+2*nt)}, v{17+nt}, s[28:31], s{55+mt} offen")
        NPRE = 6
    for i in range(16): A(f"v_mov_b32 v{32+i}, 0")
    for i in range(16): A(f"v_mov_b32 v{64+i}, 0")
    def reads(slot, ks):
        base = slot*16384 + ks*4096
        hi = base >= 65536
        off = base - (65536 if hi else 0)
        for nt in range(2):
            A(f"ds_read_b128 {v4(56+16*ks+4*nt)}, v{7 if hi else 6} offset:{off+256*nt}")
        for mt in range(2):
            for half in range(2):
                A(f"ds_read_b64_tr_b16 {v2(48+16*ks+4*mt+2*half)}, v{(14 if hi else 12)+mt} offset:{off+512*half}")
    def mfmas(ks):
        for mt in range(2):
            for nt in range(2):
                a = v4(32+8*mt+4*nt); w = v4(48+16*ks+4*mt); t = v4(56+16*ks+4*nt)
                if g1: A(f"v_mfma_f32_16x16x32_bf16 {a}, {w}, {t}, {a}")
                else:  A(f"v_mfma_f32_16x16x32_bf16 {a}, {t}, {w}, {a}")
    A("s_mov_b32 s57, 0")
    NIT = NS // RING
    mark(A, 2)
    A(f"s_waitcnt vmcnt({4*(RING-2)})")
    mark(A, 3)
    A(f"L_{P}_loop:")
    for sl in range(RING):
        A(f"s_waitcnt vmcnt({4*(RING-2)}) lgkmcnt(0)")
        A("s_barrier")
        if sl == 1:
            A(f"s_cmp_eq_u32 s57, {NIT-1}")
            A(f"s_cselect_b32 s46, {OOB:#x}, s46\ns_cselect_b32 s47, {OOB:#x}, s47\ns_cselect_b32 s52, 0, s52")
        issue((sl + RING - 1) % RING)
        reads(sl, 0)
        mfmas(1)
        reads(sl, 1)
        A("s_waitcnt lgkmcnt(6)")
        mfmas(0)
    A("s_add_u32 s57, s57, 1")
    A(f"s_cmp_lt_u32 s57, {NIT}")
    A(f"s_cbranch_scc1 L_{P}_loop")
    A("s_waitcnt lgkmcnt(0)")
    mfmas(1)
    mark(A, 4)
    if g1:
        A("v_mul_u32_u24 v16, 7168, v3")
        A("v_lshl_add_u32 v16, v2, 4, v16")
        A("v_add_u32 v17, 256, v16")
        A("s_lshl_b32 s54, s50, 3")
        A("v_add_u32 v19, s54, v2")
        A("v_cmp_gt_u32 vcc, 16, v19")
        A(f"v_mov_b32 v19, {OOB:#x}")
        A("v_cndmask_b32 v17, v19, v17, vcc")
        A("s_lshl_b32 s53, s40, 1\ns_add_u32 s53, s53, s49\ns_mul_i32 s53, s53, 28672")
        A("s_mul_i32 s54, s39, 896\ns_add_u32 s53, s53, s54\ns_lshl_b32 s54, s50, 9\ns_add_u32 s53, s53, s54")
        for k in range(4):
            A(f"v_lshlrev_b32 v{24+2*k}, 16, v{20+k}")
            A(f"v_and_b32 v{25+2*k}, 0xffff0000, v{20+k}")
        c1 = -2.0*0.7978845608028654*1.4426950408889634
        c2 = c1*0.044715
        A(f"s_mov_b32 s58, {int(np.float32(c1).view(np.uint32)):#x}\ns_mov_b32 s59, s58")
        A(f"s_mov_b32 s60, {int(np.float32(c2).view(np.uint32)):#x}\ns_mov_b32 s61, s60")
        A("v_mov_b32 v80, s58\nv_mov_b32 v81, s58")
        bf_round_arr(A, 32, 16, 48)
        for mt in range(2):
            for nt in range(2):
                for h in range(2):
                    a = 32+8*mt+4*nt+2*h
                    A(f"v_pk_add_f32 {v2(a)}, {v2(a)}, {v2(24+4*mt+2*h)}")
        bf_round_arr(A, 32, 16, 48)
        for k in range(8): A(f"v_pk_mul_f32 {v2(64+2*k)}, {v2(32+2*k)}, {v2(32+2*k)}")
        for k in range(8): A(f"v_pk_fma_f32 {v2(64+2*k)}, {v2(64+2*k)}, s[60:61], v[80:81]")
        for k in range(8): A(f"v_pk_mul_f32 {v2(64+2*k)}, {v2(64+2*k)}, {v2(32+2*k)}")
        for k in range(16): A(f"v_exp_f32 v{64+k}, v{64+k}")
        for k in range(16): A(f"v_add_f32 v{64+k}, 1.0, v{64+k}")
        for k in range(16): A(f"v_rcp_f32 v{64+k}, v{64+k}")
        for k in range(8): A(f"v_pk_mul_f32 {v2(32+2*k)}, {v2(32+2*k)}, {v2(64+2*k)}")
        for nt in range(2):
            for mt in range(2):
                for h in range(2):
                    a = 32+8*mt+4*nt+2*h
                    A(f"v_cvt_pk_bf16_f32 v{48+4*nt+2*mt+h}, v{a}, v{a+1}")
            A(f"buffer_store_dwordx4 {v4(48+4*nt)}, v{16+nt}, s[24:27], s53 offen")
    else:
        A("v_lshlrev_b32 v20, 16, v20\nv_lshlrev_b32 v22, 16, v21")
        for k in range(8):
            A(f"v_lshlrev_b32 v{64+2*k}, 16, v{24+k}")
            A(f"v_and_b32 v{65+2*k}, 0xffff0000, v{24+k}")
        bf_round_arr(A, 32, 16, 48)
        for mt in range(2):
            for k in range(4):
                a = 32+8*mt+2*k
                A(f"v_pk_add_f32 {v2(a)}, {v2(a)}, {v2(20+2*mt)} op_sel_hi:[1,0]")
        bf_round_arr(A, 32, 16, 48)
        for k in range(8): A(f"v_pk_add_f32 {v2(32+2*k)}, {v2(32+2*k)}, {v2(64+2*k)}")
        for k in range(8): A(f"v_cvt_pk_bf16_f32 v{48+k}, v{32+2*k}, v{33+2*k}")
        for mt in range(2):
            for nt in range(2):
                A(f"buffer_store_dwordx2 {v2(48+4*mt+2*nt)}, v{17+nt}, s[24:27], s{55+mt} offen")
    tail(A, name)
    return A.finalize(), desc(name, 84)

def main(out):
    ks = [kernel_A(), kernel_B(), kernel_C(), gemm(1), gemm(2)]
    hdr = open("sequential_preLN__spectral_gfnet__mixer_token_mlp__prompt.s.ref").read().split("\n")
    hdr = [l for l in hdr if l.startswith(";") and "@launch" not in l and "Override" not in l and "grid=ceil" not in l]
    L = "\n".join(hdr) + "\n"
    L += f"; @launch kernel=kA_kernel grid=(256,1,1) block=(512,1,1) lds={32*LDS_A_PITCH}\n"
    L += "; @launch kernel=kB_kernel grid=(256,1,1) block=(128,1,1) lds=0\n"
    L += f"; @launch kernel=kC_kernel grid=(256,1,1) block=(256,1,1) lds={HX+7168}\n"
    L += "; @launch kernel=kD_kernel grid=(224,1,1) block=(256,1,1) lds=131072\n"
    L += "; @launch kernel=kE_kernel grid=(256,1,1) block=(256,1,1) lds=114688\n"
    L += '.amdgcn_target "amdgcn-amd-amdhsa--gfx950"\n.text\n'
    for code, _ in ks: L += code
    L += '.section .rodata,"a"\n'
    for _, d in ks: L += d
    L += emit_table("tblA", table_A()) + emit_table("tblB", table_B()) + emit_table("tblC", table_C())
    open(out, "w").write(L)
    print("wrote", out, len(L), "bytes")

if __name__ == "__main__":
    if len(sys.argv) > 2 and sys.argv[2] == "stamp": STAMP = True
    main(sys.argv[1] if len(sys.argv) > 1 else "sequential_preLN__spectral_gfnet__mixer_token_mlp__prompt.s")
```

```python
import sys, os, numpy as np
from asmlib import Asm

S, D, F = 2048, 448, 1792
WS_T, WS_TP, WS_H, WS_HT, WS_UT = 0x0, 0x200000, 0x400000, 0x600000, 0x800000
WS_MAX, WS_EPOCH = 0xA00000, 0xA01000
WS_FL = [0xA10000, 0xA20000, 0xA30000, 0xA40000]
WS_BYTES = 0x1000000
WS_STAMP = 0x2000000
OOB = 0x40000000
NAME = "sequential_preLN__spectral_gfnet__mixer_token_mlp__prompt_kernel"
STAMP = False
MARKS = os.environ.get("MARKS", "top")
WT = "sc0 sc1"
XNT = os.environ.get("XNT", " nt")
SLEEP = int(os.environ.get("SLEEP", "2"))
SOLO = int(os.environ.get("SOLO", "0"))
PF1 = int(os.environ.get("PF1", "1"))
PF2 = os.environ.get("PF2", "W0")

def kappa_to_k(kap):
    t, col = kap >> 4, kap & 15
    k = 2*(16*t + col) if t < 8 else 2*(16*(t-8) + col) + 1
    return k if k <= 224 else -1
def f16bits(x): return np.asarray(x, dtype=np.float64).astype(np.float16).view(np.uint16)
def fbits(x): return int(np.float32(x).view(np.uint32))
def kslots(g): return np.array([4*g + j if j < 4 else 16 + 4*g + j - 4 for j in range(8)])

A_PITCH = 480
B_T, B_X, B_M = 0, 8192, 16384
C_TP, C_TBL, C_SM, C_ZF = 0, 32768, 47104, 49152
ZP, ZPB = 160, 2576
C_DUMMY = C_ZF + 4*ZPB
C_HX = C_DUMMY + 48
HXP = 960
C_END = C_HX + 8*HXP
L_MISC = C_END
F_E = 67584; NE = 11
NRS = 4; F_RB = NRS*28672; F_LDS = 163840
assert L_MISC + 64 <= F_E and F_E + 8*NE*1024 <= F_LDS
def zrow(k1): return (k1 >> 1) + 8*(k1 & 1)
def zk1(row): return 2*(row & 7) + (row >> 3)

def table_A():
    out = np.zeros((15, 2, 7, 64, 8), np.float64)
    for t in range(15):
        for lane in range(64):
            g, col = lane >> 4, lane & 15
            k = kappa_to_k(16*t + col)
            if k < 0: continue
            for ks in range(7):
                d = 32*ks + 8*g + np.arange(8)
                ang = 2*np.pi*((d*k) % 448)/448
                out[t, 0, ks, lane] = np.cos(ang)/64
                out[t, 1, ks, lane] = -np.sin(ang)/64
    return f16bits(out).tobytes()
def table_B():
    out = np.zeros((4, 2, 2, 64, 8), np.float64)
    for m4 in range(4):
        for ks in range(2):
            for lane in range(64):
                g, row = lane >> 4, lane & 15
                ang = 2*np.pi*(((16*m4 + row)*(32*ks + kslots(g))) % 64)/64
                out[m4, 0, ks, lane] = np.cos(ang)/8
                out[m4, 1, ks, lane] = np.sin(ang)/8
    return f16bits(out).tobytes()
def table_C():
    f28 = np.zeros((2, 2, 2, 64, 4, 2), np.float64)
    for ks in range(2):
        for dt in range(2):
            for lane in range(64):
                g, col = lane >> 4, lane & 15
                d2 = 16*dt + col
                if d2 >= 28: continue
                for r in range(4):
                    k2 = 16*ks + 4*g + r
                    if k2 == 28: k2 = 0
                    elif k2 == 29: k2 = 14
                    elif k2 >= 28: continue
                    ang = 2*np.pi*((k2*d2) % 28)/28
                    c, s = np.cos(ang)/4, np.sin(ang)/4
                    f28[ks, dt, 0, lane, r] = (c, -s)
                    f28[ks, dt, 1, lane, r] = (s, c)
    tw = np.zeros((2, 2, 64, 4), np.float32)
    f16 = np.zeros((2, 64, 4, 2), np.float64)
    for lane in range(64):
        g, col = lane >> 4, lane & 15
        for r in range(4):
            k1 = zk1(4*g + r)
            for dt in range(2):
                ang = 2*np.pi*((k1*(16*dt + col)) % 448)/448
                tw[dt, 0, lane, r] = np.cos(ang); tw[dt, 1, lane, r] = np.sin(ang)
            ang = 2*np.pi*((k1*col) % 16)/16
            c, s = np.cos(ang)/4, np.sin(ang)/4
            f16[0, lane, r] = (c, -s)
            f16[1, lane, r] = (s, c)
    ad = np.zeros((8, 64, 2, 2), np.uint16)
    for w in range(8):
        for lane in range(64):
            p, col = lane >> 4, lane & 15
            for tau in range(2):
                k = kappa_to_k(16*(2*w+tau) + col) if 2*w+tau < 15 else -1
                def pos(k1, k2): return C_ZF + p*ZPB + zrow(k1)*ZP + k2*4
                if k < 0: a1 = a2 = C_DUMMY
                else:
                    a1 = pos(k & 15, k >> 4)
                    if k == 0: a2 = pos(0, 28)
                    elif k == 224: a2 = pos(0, 29)
                    else: a2 = pos((448-k) & 15, (448-k) >> 4)
                ad[w, lane, tau] = (a1, a2)
    hd = np.zeros((512, 2), np.uint32)
    for d in range(512):
        if d < 448:
            dt_, dl = divmod(d, 56); nt, col = dl >> 4, dl & 15
            hd[d] = (dt_*229376 + nt*1024 + col*16, 256 if nt < 3 else 128)
        else: hd[d] = (OOB, 0)
    per = np.concatenate([ad.reshape(512, 4).view(np.uint32), hd], axis=1)
    return f16bits(f28).tobytes() + tw.tobytes() + f16bits(f16).tobytes() + per.tobytes()
T_B, T_C, T_PER, T_A = 0, 16384, 30720, 40960
T_BYTES = T_A + 15*14336
def tables():
    b = table_B() + table_C()
    b += bytes(T_A - len(b))
    return b + table_A()

def emit_table(name, data):
    q = np.frombuffer(data, dtype=np.uint64)
    L = [f".p2align 8", f".type {name},@object", f"{name}:"]
    for i in range(0, len(q), 8):
        L.append(".quad " + ",".join(("0x%x" % v) if v else "0" for v in q[i:i+8]))
    L.append(f".size {name}, {len(data)}")
    return "\n".join(L) + "\n"

def srd_pre(A, d, nbytes): A(f"s_mov_b32 s{d+2}, {nbytes:#x}\ns_mov_b32 s{d+3}, 0x20000")
def srd_ptr(A, d, lo): A(f"s_mov_b32 s{d}, s{lo}\ns_and_b32 s{d+1}, s{lo+1}, 0xffff")
def v2(r): return f"v[{r}:{r+1}]"
def v4(r): return f"v[{r}:{r+3}]"

def reduce_rows(A, regs, tmps, op="v_add_f32", full=False):
    for sh in (8, 4, 2, 1):
        for r in regs: A(f"{op}_dpp v{r}, v{r}, v{r} row_ror:{sh} row_mask:0xf bank_mask:0xf")
    for sw in (["16", "32"] if full else ["16"]):
        for r, t in zip(regs, tmps): A(f"v_mov_b32 v{t}, v{r}")
        for r, t in zip(regs, tmps): A(f"v_permlane{sw}_swap_b32 v{r}, v{t}")
        for r, t in zip(regs, tmps): A(f"{op} v{r}, v{r}, v{t}")
def bf_round_scalar(A, dst, src):
    A(f"v_cvt_pk_bf16_f32 v{dst}, v{src}, v{src}\nv_lshlrev_b32 v{dst}, 16, v{dst}")
def bf_round_arr(A, base, n, pk):
    for i in range(n//2): A(f"v_cvt_pk_bf16_f32 v{pk+i}, v{base+2*i}, v{base+2*i+1}")
    for i in range(n//2): A(f"v_lshlrev_b32 v{base+2*i}, 16, v{pk+i}\nv_and_b32 v{base+2*i+1}, s59, v{pk+i}")
def ln_stats_tail(A, rows):
    for R in rows: A(f"v_sub_f32 v{R['t0']}, v{R['mu']}, v{R['m']}")
    for R in rows: A(f"v_mul_f32 v{R['ss']}, s60, v{R['ss']}")
    for R in rows: A(f"v_fma_f32 v{R['ss']}, -v{R['t0']}, v{R['t0']}, v{R['ss']}")
    for R in rows: A(f"v_max_f32 v{R['ss']}, 0, v{R['ss']}")
    for R in rows: bf_round_scalar(A, R['ss'], R['ss'])
    for R in rows: A(f"v_add_f32 v{R['ss']}, s61, v{R['ss']}")
    for R in rows: bf_round_scalar(A, R['ss'], R['ss'])
    for R in rows: A(f"v_sqrt_f32 v{R['ss']}, v{R['ss']}")
    for R in rows: bf_round_scalar(A, R['ss'], R['ss'])
    for R in rows: A(f"v_rcp_f32 v{R['ss']}, v{R['ss']}")

XCD, NN, DT, FT, ST, KQ, MH, XQ = 24, 25, 26, 27, 28, 29, 30, 31
TAG = 58

def build():
    A = Asm(); name = NAME
    def mark(group, i):
        if STAMP and group == MARKS: A(f"s_memtime s[{76+2*i}:{77+2*i}]\ns_waitcnt lgkmcnt(0)")
    A(f".globl {name}\n.p2align 8\n.type {name},@function\n{name}:")
    A(f"s_cmp_ge_u32 s2, 256\ns_cbranch_scc1 L_end2")
    if STAMP:
        A("s_memrealtime s[98:99]\ns_memtime s[76:77]")
        for i in range(1, 7): A(f"s_mov_b32 s{76+2*i}, 0")
    A("s_load_dwordx4 s[4:7], s[0:1], 0\ns_load_dwordx2 s[8:9], s[0:1], 16\ns_load_dwordx2 s[10:11], s[0:1], 80")
    A("s_load_dwordx8 s[68:75], s[0:1], 32\ns_load_dwordx2 s[64:65], s[0:1], 64")
    A("v_lshrrev_b32 v2, 6, v0\nv_and_b32 v1, 63, v0")
    A("s_and_b32 s36, s2, 63")
    A("v_readfirstlane_b32 s38, v2")
    A("s_lshr_b32 s37, s2, 6")
    A("v_lshlrev_b32 v7, 4, v1")
    A("s_getpc_b64 s[16:17]\ns_add_u32 s16, s16, tbl@rel32@lo+4\ns_addc_u32 s17, s17, tbl@rel32@hi+12\ns_and_b32 s17, s17, 0xffff")
    srd_pre(A, 16, T_BYTES)
    A("s_lshl_b32 s39, s37, 2\ns_add_u32 s39, s39, s38")
    A("s_cmp_ge_u32 s38, 4\ns_cbranch_scc1 L_A_nt")
    A(f"s_mul_i32 s35, s39, 14336\ns_add_u32 s35, s35, {T_A}")
    for f in range(14):
        A(f"buffer_load_dwordx4 {v4(64+4*f)}, v7, s[16:19], s35 offen offset:{(f%4)*1024}")
        if f % 4 == 3: A("s_add_u32 s35, s35, 4096")
    A("L_A_nt:")
    A("v_and_b32 v8, 31, v1\nv_lshrrev_b32 v9, 5, v1")
    A("v_mul_u32_u24 v5, 57344, v9\nv_lshl_add_u32 v5, v8, 4, v5")
    A("v_cmp_gt_u32 s[62:63], 28, v8")
    A(f"v_mov_b32 v6, {OOB:#x}")
    srd_pre(A, 12, S*D*2)
    A("v_cndmask_b32 v5, v6, v5, s[62:63]")
    A("s_lshl_b32 s40, s38, 8\ns_add_u32 s40, s40, s36\ns_mul_i32 s40, s40, 896\ns_add_u32 s41, s40, 114688")
    A("v_and_b32 v2, 15, v1\nv_lshrrev_b32 v3, 4, v1")
    A(f"v_mul_u32_u24 v4, {A_PITCH}, v9\nv_lshl_add_u32 v4, v8, 4, v4\ns_mul_i32 s43, s38, {4*A_PITCH}\nv_add_u32 v4, s43, v4")
    srd_pre(A, 20, WS_BYTES); srd_pre(A, 52, S*F*2)
    A("s_mov_b32 s60, 0x3b124925\ns_mov_b32 s61, 0x3727c5ac\ns_mov_b32 s59, 0xffff0000\ns_mov_b32 s56, -1\ns_mov_b32 s57, 0xffffff")
    A("s_cmp_lt_u32 s37, 2\ns_cselect_b32 s66, 1.0, -1.0\ns_mov_b32 s67, s66")
    A("s_waitcnt lgkmcnt(0)")
    mark("A", 1)
    srd_ptr(A, 12, 4)
    A("buffer_load_dwordx4 v[128:131], v5, s[12:15], s40 offen" + XNT)
    A("buffer_load_dwordx4 v[132:135], v5, s[12:15], s40 offen offset:448" + XNT)
    A("buffer_load_dwordx4 v[136:139], v5, s[12:15], s41 offen" + XNT)
    A("buffer_load_dwordx4 v[140:143], v5, s[12:15], s41 offen offset:448" + XNT)
    srd_ptr(A, 20, 10)
    A(f"s_add_u32 s44, s10, {WS_EPOCH:#x}\ns_addc_u32 s45, s11, 0\ns_load_dword s{TAG}, s[44:45], 0")
    A(f"s_and_b32 s{XCD}, s2, 7\ns_lshr_b32 s{NN}, s2, 3")
    A(f"s_and_b32 s{DT}, s{XCD}, 1\ns_lshl_b32 s{DT}, s{DT}, 2\ns_and_b32 s34, s{NN}, 3\ns_add_u32 s{DT}, s{DT}, s34")
    A(f"s_lshr_b32 s{XQ}, s{XCD}, 1\ns_lshr_b32 s34, s{NN}, 2")
    A(f"s_mul_i32 s{FT}, s{XQ}, 7\ns_add_u32 s{FT}, s{FT}, s34\ns_lshl_b32 s{ST}, s{XQ}, 3\ns_add_u32 s{ST}, s{ST}, s34")
    A(f"s_lshr_b32 s{KQ}, s38, 1\ns_and_b32 s{MH}, s38, 1")
    A(f"s_mov_b32 s40, s6\ns_and_b32 s41, s7, 0xffff\ns_mov_b32 s42, {S*450:#x}\ns_mov_b32 s43, 0x20000")
    A(f"s_mov_b32 s48, s8\ns_and_b32 s49, s9, 0xffff\ns_mov_b32 s50, {S*450:#x}\ns_mov_b32 s51, 0x20000")
    A(f"v_mul_u32_u24 v56, {A_PITCH}, v2\nv_lshl_add_u32 v56, v3, 4, v56")
    A("v_lshlrev_b32 v57, 16, v2\nv_and_b32 v61, 1, v3\nv_lshl_add_u32 v57, v61, 5, v57\nv_lshrrev_b32 v61, 1, v3\nv_lshl_add_u32 v57, v61, 4, v57")
    A("s_barrier")
    A("s_cmp_ge_u32 s38, 4\ns_cbranch_scc1 L_A_hi")
    tl = Asm()
    A("v_cvt_f32_u32 v58, v2\nv_add_f32 v59, 0x41800000, v58")
    A("v_lshlrev_b32 v60, 8, v3\nv_add_u32 v60, s36, v60\nv_cvt_f32_u32 v60, v60\nv_mul_f32 v60, 0x3a000000, v60")
    for jp in range(4):
        for h in range(2):
            j = 2*jp + h
            A(f"v_add_f32 v{200+h}, {fbits((64*(j & 3) + 1024*(j >> 2))/2048.0):#x}, v60")
        for nt in range(2):
            for h in range(2):
                if tl.lines: A(tl.lines.pop(0))
                A(f"v_mul_f32 v61, v{58+nt}, v{200+h}\nv_cos_f32 v{202+h}, v61\nv_sin_f32 v{204+h}, v61")
            A(f"v_cvt_pk_f16_f32 v{40+4*nt+jp}, v202, v203\nv_cvt_pk_f16_f32 v{48+4*nt+jp}, v204, v205")
    assert not tl.lines
    A("s_lshl_b32 s44, s36, 10\ns_lshl_b32 s45, s39, 6\ns_add_u32 s44, s44, s45\ns_add_u32 s45, s44, 0x100000")
    A("s_waitcnt vmcnt(0)")
    A("s_branch L_A_ln")
    A("L_A_hi:")
    A("s_lshl_b32 s35, s2, 2\ns_add_u32 s35, s35, s38\ns_sub_u32 s35, s35, 4\ns_lshl_b32 s35, s35, 10")
    A("buffer_load_dwordx4 v[64:67], v7, s[40:43], s35 offen\nbuffer_load_dwordx4 v[68:71], v7, s[48:51], s35 offen")
    A("v_lshlrev_b32 v8, 7, v1\ns_mul_i32 s35, s2, 28672\ns_and_b32 s33, s38, 3\ns_mul_i32 s33, s33, 7168\ns_add_u32 s35, s35, s33")
    srd_ptr(A, 52, 68)
    A("s_mov_b64 exec, s[56:57]")
    if PF1: A("buffer_load_dword v250, v8, s[52:55], s35 offen")
    A("s_mov_b64 exec, -1")
    A(f"s_waitcnt vmcnt({2+PF1})")
    A("L_A_ln:")
    mark("A", 2)
    X = [144, 160]; RAW = [128, 136]
    st = [dict(mu=176, m=178, ss=180, t0=177, acc=182, acc2=184), dict(mu=186, m=188, ss=190, t0=187, acc=192, acc2=194)]
    for p in range(2):
        for k in range(8):
            A(f"v_lshlrev_b32 v{X[p]+2*k}, 16, v{RAW[p]+k}\nv_and_b32 v{X[p]+2*k+1}, s59, v{RAW[p]+k}")
    for p in range(2):
        A(f"v_pk_add_f32 {v2(st[p]['acc'])}, {v2(X[p])}, {v2(X[p]+2)}\nv_pk_add_f32 {v2(st[p]['acc2'])}, {v2(X[p]+4)}, {v2(X[p]+6)}")
    for k in (4, 6):
        for p in range(2):
            A(f"v_pk_add_f32 {v2(st[p]['acc'])}, {v2(st[p]['acc'])}, {v2(X[p]+2*k)}\nv_pk_add_f32 {v2(st[p]['acc2'])}, {v2(st[p]['acc2'])}, {v2(X[p]+2*k+2)}")
    for p in range(2): A(f"v_pk_add_f32 {v2(st[p]['acc'])}, {v2(st[p]['acc'])}, {v2(st[p]['acc2'])}")
    for p in range(2): A(f"v_add_f32 v{st[p]['mu']}, v{st[p]['acc']}, v{st[p]['acc']+1}")
    reduce_rows(A, [s_['mu'] for s_ in st], [s_['t0'] for s_ in st])
    for p in range(2): A(f"v_mul_f32 v{st[p]['mu']}, s60, v{st[p]['mu']}")
    for p in range(2): bf_round_scalar(A, st[p]['m'], st[p]['mu'])
    for k in range(8):
        for p in range(2):
            A(f"v_pk_add_f32 {v2(X[p]+2*k)}, {v2(X[p]+2*k)}, {v2(st[p]['m'])} op_sel_hi:[1,0] neg_lo:[0,1] neg_hi:[0,1]")
    for p in range(2): A(f"v_pk_mul_f32 {v2(st[p]['acc'])}, {v2(X[p])}, {v2(X[p])}")
    for k in range(1, 8):
        for p in range(2): A(f"v_pk_fma_f32 {v2(st[p]['acc'])}, {v2(X[p]+2*k)}, {v2(X[p]+2*k)}, {v2(st[p]['acc'])}")
    for p in range(2): A(f"v_add_f32 v{st[p]['ss']}, v{st[p]['acc']}, v{st[p]['acc']+1}")
    for p in range(2): A(f"v_cndmask_b32 v{st[p]['ss']}, 0, v{st[p]['ss']}, s[62:63]")
    for k in range(4):
        for p in range(2): A(f"v_pk_fma_f32 {v2(X[p]+2*k)}, {v2(X[p]+8+2*k)}, s[66:67], {v2(X[p]+2*k)}")
    reduce_rows(A, [s_['ss'] for s_ in st], [s_['t0'] for s_ in st])
    ln_stats_tail(A, st)
    for k in range(4):
        for p in range(2): A(f"v_pk_mul_f32 {v2(X[p]+2*k)}, {v2(X[p]+2*k)}, {v2(st[p]['ss'])} op_sel_hi:[1,0]")
    for k in range(4):
        for p in range(2): A(f"v_cvt_pk_f16_f32 v{RAW[p]+k}, v{X[p]+2*k}, v{X[p]+2*k+1}")
    A("s_mov_b64 exec, s[62:63]")
    A(f"ds_write_b128 v4, {v4(RAW[0])}\nds_write_b128 v4, {v4(RAW[1])} offset:{2*A_PITCH}")
    A("s_mov_b64 exec, -1")
    mark("A", 3)
    A("s_waitcnt lgkmcnt(0)")
    A("s_barrier")
    mark("A", 4)
    A(f"s_add_u32 s{TAG}, s{TAG}, 1")
    A("s_cmp_ge_u32 s38, 4\ns_cbranch_scc1 L_A_mx")
    A("s_cmp_ge_u32 s39, 15\ns_cbranch_scc1 L_A_done")
    for f in range(14): A(f"ds_read_b128 {v4(128+4*f)}, v56 offset:{(f&1)*16*A_PITCH + (f>>1)*64}")
    A("s_waitcnt vmcnt(0)")
    acc = {(0, 0): 8, (0, 1): 12, (1, 0): 16, (1, 1): 20}
    for ks in range(7):
        A(f"s_waitcnt lgkmcnt({12-2*ks})")
        for mt in range(2):
            for ri in range(2):
                a = acc[(ri, mt)]
                A(f"v_mfma_f32_16x16x32_f16 {v4(a)}, {v4(128+4*(2*ks+mt))}, {v4(64+4*(7*ri+ks))}, {'0' if ks == 0 else v4(a)}")
    for mt in range(2):
        for h in range(2):
            r0 = acc[(0, mt)] + 2*h; i0 = acc[(1, mt)] + 2*h
            A(f"v_cvt_pk_f16_f32 v{24+2*mt+h}, v{r0}, v{r0+1}\nv_cvt_pk_f16_f32 v{28+2*mt+h}, v{i0}, v{i0+1}\nv_cvt_pk_f16_f32 v{32+2*mt+h}, -v{r0}, -v{r0+1}")
    for nt in range(2):
        A(f"v_mfma_f32_16x16x32_f16 {v4(64+8*nt)}, v[24:27], {v4(40+4*nt)}, 0")
        A(f"v_mfma_f32_16x16x32_f16 {v4(68+8*nt)}, v[28:31], {v4(40+4*nt)}, 0")
    for nt in range(2):
        A(f"v_mfma_f32_16x16x32_f16 {v4(64+8*nt)}, v[28:31], {v4(48+4*nt)}, {v4(64+8*nt)}")
        A(f"v_mfma_f32_16x16x32_f16 {v4(68+8*nt)}, v[32:35], {v4(48+4*nt)}, {v4(68+8*nt)}")
    def pack_store(o, re, im, va, so):
        A(f"v_cvt_pk_f16_f32 v{o}, v{re}, v{re+1}\nv_cvt_pk_f16_f32 v{o+1}, v{re+2}, v{re+3}")
        A(f"v_cvt_pk_f16_f32 v{o+2}, v{im}, v{im+1}\nv_cvt_pk_f16_f32 v{o+3}, v{im+2}, v{im+3}")
        A(f"v_permlane16_swap_b32 v{o}, v{o+2}\nv_permlane16_swap_b32 v{o+1}, v{o+3}")
        A(f"buffer_store_dwordx4 {v4(o)}, v{va}, s[20:23], s{so} offen {WT}")
    for nt in range(2): pack_store(80+4*nt, 64+8*nt, 68+8*nt, 57, 44+nt)
    mark("A", 5)
    A("s_branch L_A_done")
    A("L_A_mx:")
    A(f"s_waitcnt vmcnt({PF1})\ns_mov_b32 s34, 0x7fff7fff")
    for i in range(8): A(f"v_and_b32 v{64+i}, s34, v{64+i}")
    for i in range(1, 8): A(f"v_pk_max_u16 v64, v64, v{64+i}")
    A("v_lshlrev_b32 v8, 16, v64\nv_and_b32 v9, s59, v64\nv_max_u32 v8, v8, v9")
    reduce_rows(A, [8], [9], op="v_max_u32", full=True)
    A(f"s_lshl_b32 s47, s2, 4\ns_lshl_b32 s34, s38, 2\ns_add_u32 s47, s47, s34\ns_add_u32 s47, s47, {WS_MAX-16:#x}\nv_mov_b32 v9, 0\ns_mov_b64 exec, 1")
    A(f"buffer_store_dword v8, v9, s[20:23], s47 offen {WT}")
    A("s_mov_b64 exec, -1")
    A(f"v_mov_b32 v8, {L_MISC}\nds_write_b32 v8, v9")
    A(f"s_and_b32 s35, s38, 3\ns_lshl_b32 s35, s35, 13\ns_add_u32 m0, s35, {B_M}")
    for i in range(4): A(f"buffer_load_dwordx4 v7, s[16:19], s35 offen offset:{i*1024} lds")
    A(f"s_add_u32 s35, s35, 4096\ns_add_u32 m0, s35, {B_M}")
    for i in range(2): A(f"buffer_load_dwordx4 v7, s[16:19], s35 offen offset:{i*1024} lds")
    A("s_cmp_eq_u32 s38, 7\ns_cbranch_scc1 L_A_done")
    for i in range(2, 4): A(f"buffer_load_dwordx4 v7, s[16:19], s35 offen offset:{i*1024} lds")
    A("L_A_done:")

    def publish(k, nyoung, nrep, offs, extra=None):
        A(f"s_waitcnt vmcnt({nyoung}) lgkmcnt(0)")
        A("s_barrier")
        A(f"s_cmp_lg_u32 s38, 0\ns_cbranch_scc1 L_pub{k}")
        if extra: extra()
        A(offs)
        A(f"v_mov_b32 v8, s{TAG}\nv_lshlrev_b32 v9, 10, v1\ns_mov_b64 exec, {(1 << nrep) - 1}")
        A(f"buffer_store_dword v8, v9, s[20:23], s47 offen {WT}")
        A("s_mov_b64 exec, -1")
        A(f"L_pub{k}:")
        if k < 2: mark("W", 1+3*k)
    def wait(k, offs, nlanes, tmp=32):
        A(f"s_cmp_lg_u32 s38, 0\ns_cbranch_scc1 L_w{k}")
        A(offs)
        A("s_mov_b32 s50, 0")
        if nlanes < 64: A(f"s_mov_b64 exec, {(1 << nlanes) - 1}")
        A(f"L_poll{k}:")
        A(f"buffer_load_dwordx4 {v4(tmp)}, v7, s[20:23], s47 offen {WT}")
        A("s_waitcnt vmcnt(0)")
        A(f"v_xor_b32 v{tmp}, s{TAG}, v{tmp}\nv_xor_b32 v{tmp+1}, s{TAG}, v{tmp+1}\nv_xor_b32 v{tmp+2}, s{TAG}, v{tmp+2}\nv_xor_b32 v{tmp+3}, s{TAG}, v{tmp+3}")
        A(f"v_or3_b32 v{tmp}, v{tmp}, v{tmp+1}, v{tmp+2}\nv_or_b32 v{tmp}, v{tmp}, v{tmp+3}")
        A(f"v_cmp_ne_u32 vcc, 0, v{tmp}")
        A("s_add_u32 s50, s50, 1")
        A(f"s_cmp_gt_u32 s50, 300000\ns_cbranch_scc1 L_x{k}")
        A("s_and_b64 exec, exec, vcc")
        A(f"s_cbranch_scc0 L_x{k}")
        if SLEEP: A(f"s_sleep {SLEEP}")
        A(f"s_branch L_poll{k}")
        A(f"L_x{k}:")
        A("s_mov_b64 exec, -1")
        A(f"L_w{k}:")
        if k < 2: mark("W", 2+3*k)
        A("s_barrier")
        if k < 2: mark("W", 3+3*k) if k == 0 else None
    def full_pub(k): return f"s_lshl_b32 s47, s2, 2\ns_add_u32 s47, s47, {WS_FL[k]:#x}"
    def full_wait(k): return f"s_lshl_b32 s47, s{XCD}, 10\ns_add_u32 s47, s47, {WS_FL[k]:#x}"
    def pub_max():
        A(f"v_mov_b32 v9, {L_MISC}\nds_read_b128 v[12:15], v9\nds_read_b128 v[16:19], v9 offset:16\ns_waitcnt lgkmcnt(0)")
        A("v_max3_u32 v12, v12, v13, v14\nv_max3_u32 v16, v16, v17, v18\nv_max3_u32 v12, v12, v15, v19\nv_max_u32 v12, v12, v16")
        A(f"s_lshl_b32 s47, s2, 2\ns_add_u32 s47, s47, {WS_MAX:#x}\nv_mov_b32 v9, 0\ns_mov_b64 exec, 1")
        A(f"buffer_store_dword v12, v9, s[20:23], s47 offen {WT}")
        A("s_mov_b64 exec, -1\ns_waitcnt vmcnt(0)")
    VW1, VW2, VT0 = 252, 253, 254
    def w_voff(dst, g1, t0, t1):
        A(f"v_and_b32 v{t0}, 3, v1\nv_lshrrev_b32 v{t1}, 3, v1\nv_and_b32 v{t1}, 2, v{t1}\nv_xor_b32 v{t0}, v{t0}, v{t1}")
        if g1: A(f"v_bfe_u32 v{t1}, v1, 2, 2\nv_lshl_add_u32 v{t1}, v3, 3, v{t1}\ns_mov_b32 s34, {64*3584}\nv_mul_lo_u32 v{dst}, v{t1}, s34")
        else:  A(f"v_lshrrev_b32 v{t1}, 2, v1\nv_lshlrev_b32 v{dst}, 12, v{t1}")
        A(f"v_lshl_add_u32 v{dst}, v{t0}, 4, v{dst}")
    def w_dma(g1, u, vo, m0expr):
        A(m0expr)
        A(f"buffer_load_dwordx4 v{vo}, s[52:55], s{32 + (u & 1)} offen lds")
        A(f"s_add_u32 s{32 + (u & 1)}, s{32 + (u & 1)}, {3584 if g1 else 131072}")
    def tr(u, va, off):
        for mt in range(2):
            A(f"ds_read_b64_tr_b16 {v2(128 + 8*(u >> 1) + 4*mt + 2*(u & 1))}, v{va+mt} offset:{off}")
    def tr_lane(dst, t0, t1):
        A(f"v_lshrrev_b32 v{t0}, 2, v2\nv_lshl_add_u32 v{t0}, v3, 2, v{t0}\nv_lshlrev_b32 v{t0}, 6, v{t0}")
        A(f"v_and_b32 v{t1}, 3, v2\nv_lshl_add_u32 v{t0}, v{t1}, 3, v{t0}\nv_and_b32 v{t1}, 1, v3\nv_lshl_add_u32 v{dst}, v{t1}, 5, v{t0}\nv_xor_b32 v{dst+1}, 32, v{dst}")

    def pf2():
        A(f"s_cmp_lt_u32 s38, 4\ns_cbranch_scc1 L_pf2")
        A(f"s_mov_b32 s4, s72\ns_and_b32 s5, s73, 0xffff\ns_mov_b32 s6, {S*F*2:#x}\ns_mov_b32 s7, 0x20000")
        A("v_lshlrev_b32 v13, 7, v1\ns_mul_i32 s8, s2, 28672\ns_and_b32 s9, s38, 3\ns_mul_i32 s9, s9, 7168\ns_add_u32 s8, s8, s9")
        A("s_mov_b64 exec, s[56:57]\nbuffer_load_dword v251, v13, s[4:7], s8 offen\ns_mov_b64 exec, -1")
        A("L_pf2:")
    publish(0, 0, 8, full_pub(0))
    mark("top", 1)
    A("s_and_b32 s46, s2, 31\ns_lshr_b32 s47, s2, 5\ns_lshl_b32 s47, s47, 1\ns_lshr_b32 s34, s38, 2\ns_add_u32 s47, s47, s34")
    A("s_and_b32 s34, s47, 7\ns_lshl_b32 s34, s34, 5\ns_lshr_b32 s35, s47, 3\ns_add_u32 s34, s34, s35")
    A("v_lshl_add_u32 v8, v2, 1, s34")
    A("v_lshlrev_b32 v9, 7, v3\nv_add_u32 v9, s46, v9\nv_mul_u32_u24 v9, 450, v9\nv_lshl_add_u32 v9, v8, 1, v9")
    A("v_cmp_ge_u32 vcc, 0xe0, v8")
    A("v_cndmask_b32 v9, v6, v9, vcc")
    for i in range(8): A(f"v_mov_b32 v{120+i}, 0")
    A(f"s_and_b32 s34, s38, 3\ns_mul_i32 s34, s34, {16*14400}")
    for r in range(4):
        A(f"buffer_load_short_d16_hi v{120+r}, v9, s[40:43], s34 offen\nbuffer_load_short_d16_hi v{124+r}, v9, s[48:51], s34 offen")
        if r < 3: A("s_add_u32 s34, s34, 14400")
    if PF2 == "W0": pf2()
    srd_ptr(A, 52, 68)
    w_voff(VW1, True, 8, 9)
    A(f"s_mul_i32 s32, s{KQ}, {16*3584}\ns_lshl_b32 s33, s{FT}, 7\ns_add_u32 s32, s32, s33\ns_lshl_b32 s33, s{MH}, 6\ns_add_u32 s32, s32, s33")
    A(f"s_cmp_ge_u32 s{NN}, 28\ns_cselect_b32 s32, {OOB:#x}, s32\ns_add_u32 s33, s32, {256*3584}")
    A(f"s_mul_i32 s35, s38, {NE*1024}\ns_add_u32 s35, s35, {F_E}")
    def w1_batch(tag, u0, n):
        if os.environ.get("NOSTAGE"):
            A(f"s_mov_b32 s32, {OOB:#x}\ns_mov_b32 s33, {OOB:#x}")
        if not SOLO:
            for k in range(n): w_dma(True, u0+k, VW1, f"s_add_u32 m0, s35, {k*1024}")
            return
        A(f"s_cmp_eq_u32 s38, 0\ns_cbranch_scc1 L_wb{tag}")
        for k in range(n): w_dma(True, u0+k, VW1, f"s_add_u32 m0, s35, {k*1024}")
        A(f"s_cmp_lg_u32 s38, 1\ns_cbranch_scc1 L_wb{tag}")
        back = [sum(1 for k in range(n) if (u0+k) & 1 == p)*3584 + 64 for p in range(2)]
        A(f"s_sub_u32 s32, s32, {back[0]}\ns_sub_u32 s33, s33, {back[1]}")
        for k in range(n): w_dma(True, u0+k, VW1, f"s_mov_b32 m0, {F_E + k*1024}")
        A("s_add_u32 s32, s32, 64\ns_add_u32 s33, s33, 64")
        A(f"L_wb{tag}:")
    w1_batch(0, 0, NE)
    tr_lane(VT0, 8, 9)
    A(f"v_add_u32 v{VT0}, s35, v{VT0}\nv_add_u32 v{VT0+1}, s35, v{VT0+1}")
    A("s_and_b32 s46, s2, 31\ns_lshr_b32 s37, s2, 5\ns_lshr_b32 s44, s38, 2\ns_and_b32 s45, s38, 3\ns_lshl_b32 s39, s37, 1\ns_add_u32 s39, s39, s44")
    A(f"s_lshl_b32 s48, s45, 12\ns_add_u32 s48, s48, {B_M}\nv_add_u32 v8, s48, v7")
    for f in range(4): A(f"ds_read_b128 {v4(40+4*f)}, v8 offset:{f*1024}")
    A("v_lshrrev_b32 v8, 3, v1\nv_and_b32 v9, 7, v1\nv_and_b32 v4, 6, v8\nv_xor_b32 v9, v9, v4\nv_lshlrev_b32 v4, 10, v8\nv_lshl_add_u32 v4, v9, 4, v4")
    A("s_lshl_b32 s40, s46, 16\ns_lshl_b32 s41, s37, 7\ns_add_u32 s40, s40, s41\ns_lshl_b32 s41, s38, 13\ns_add_u32 s40, s40, s41\ns_lshl_b32 s42, s38, 10")
    A("v_lshrrev_b32 v8, 2, v2\nv_lshl_add_u32 v8, v3, 2, v8\nv_lshlrev_b32 v8, 7, v8\nv_and_b32 v9, 3, v2\nv_lshl_add_u32 v8, v9, 3, v8")
    A("v_and_b32 v9, 1, v3\nv_lshrrev_b32 v10, 3, v2\nv_lshl_or_b32 v9, v9, 1, v10\ns_lshl_b32 s48, s44, 1\nv_xor_b32 v9, s48, v9")
    A("v_lshl_add_u32 v112, v9, 5, v8\nv_xor_b32 v113, 32, v112")
    A(f"s_lshl_b32 s48, s44, 12\ns_add_u32 s48, s48, {B_X}\nv_add_u32 v115, s48, v7")
    A("s_lshr_b32 s49, s45, 1\ns_lshl_b32 s49, s49, 10\ns_and_b32 s50, s45, 1\ns_lshl_b32 s50, s50, 3\ns_add_u32 s49, s49, s50\nv_add_u32 v114, s49, v115")
    A("s_cmp_eq_u32 s39, 0\ns_cselect_b32 s50, 1, 0\ns_cmp_eq_u32 s39, 7\ns_cselect_b32 s50, 1, s50")
    A("v_cmp_gt_u32 vcc, s50, v2")
    A("v_mov_b32 v117, 1.0\nv_mov_b32 v8, 0.5\nv_cndmask_b32 v117, v117, v8, vcc")
    A("v_lshlrev_b32 v116, 15, v2\nv_and_b32 v8, 1, v3\nv_lshl_add_u32 v116, v8, 5, v116\nv_lshrrev_b32 v8, 1, v3\nv_lshl_add_u32 v116, v8, 4, v116")
    A(f"s_lshl_b32 s43, s46, 10\ns_lshl_b32 s48, s39, 6\ns_add_u32 s43, s43, s48\ns_lshl_b32 s48, s45, 19\ns_add_u32 s43, s43, s48\ns_add_u32 s43, s43, {WS_TP:#x}")
    A(f"s_mov_b32 s49, 0x80008000\ns_mov_b32 s48, {WS_MAX:#x}\ns_mov_b32 m0, s42\nv_lshlrev_b32 v118, 3, v0\nv_mov_b32 v119, {L_MISC}")
    wait(0, full_wait(0), 64)
    mark("top", 2); mark("B", 1)
    A("buffer_load_dwordx4 v4, s[20:23], s40 offen lds")
    A("buffer_load_dwordx2 v[8:9], v118, s[20:23], s48 offen")
    A("s_or_b32 s34, s2, s38\ns_cmp_lg_u32 s34, 0\ns_cbranch_scc1 L_B_ne")
    A(f"v_mov_b32 v12, s{TAG}\nv_mov_b32 v13, 0\ns_mov_b32 s34, {WS_EPOCH:#x}\ns_mov_b64 exec, 1")
    A("buffer_store_dword v12, v13, s[20:23], s34 offen")
    A("s_mov_b64 exec, -1\ns_waitcnt vmcnt(1)\ns_branch L_B_n2")
    A("L_B_ne:")
    A("s_waitcnt vmcnt(0)")
    A("L_B_n2:")
    A("v_max_u32 v8, v8, v9")
    for sh in (8, 4, 2, 1): A(f"v_max_u32_dpp v8, v8, v8 row_ror:{sh} row_mask:0xf bank_mask:0xf")
    A("s_mov_b32 exec_lo, 0x10001\ns_mov_b32 exec_hi, 0x10001")
    A("ds_max_u32 v119, v8")
    A("s_mov_b64 exec, -1\ns_waitcnt lgkmcnt(0)")
    A("s_barrier")
    mark("B", 2)
    A("ds_read_b32 v8, v119")
    for ks in range(2):
        for ri in range(2):
            for half in range(2):
                A(f"ds_read_b64_tr_b16 {v2(16+8*ri+4*ks+2*half)}, v{112+ri} offset:{ks*4096+half*2048}")
    for ks in range(2):
        A(f"s_waitcnt lgkmcnt({4*(1-ks)})")
        for i in range(4): A(f"v_xor_b32 v{32+4*ks+i}, s49, v{16+4*ks+i}")
        A(f"v_mfma_f32_16x16x32_f16 v[72:75], {v4(40+4*ks)}, {v4(16+4*ks)}, {'0' if ks == 0 else 'v[72:75]'}")
        A(f"v_mfma_f32_16x16x32_f16 v[76:79], {v4(40+4*ks)}, {v4(24+4*ks)}, {'0' if ks == 0 else 'v[76:79]'}")
        A(f"v_mfma_f32_16x16x32_f16 v[72:75], {v4(48+4*ks)}, {v4(24+4*ks)}, v[72:75]")
        A(f"v_mfma_f32_16x16x32_f16 v[76:79], {v4(48+4*ks)}, {v4(32+4*ks)}, v[76:79]")
    A("v_lshrrev_b32 v8, 23, v8\nv_max_u32 v8, 8, v8\nv_min_u32 v8, 0xfa, v8")
    A("v_sub_u32 v9, 0xfc, v8\nv_lshlrev_b32 v9, 23, v9\nv_mul_f32 v12, v9, v117")
    for i in range(4): A(f"v_pk_mul_f32 {v2(120+2*i)}, {v2(120+2*i)}, v[12:13] op_sel_hi:[1,0]")
    A("v_add_u32 v8, 2, v8\nv_lshlrev_b32 v8, 23, v8\nv_mul_f32 v8, 0x3d924925, v8")
    A("v_readfirstlane_b32 s62, v8")
    for h in range(2):
        xr = 72+2*h; xi = 76+2*h; wr = 120+2*h; wi = 124+2*h
        A(f"v_pk_mul_f32 v[80:81], {v2(xr)}, {v2(wr)}\nv_pk_mul_f32 v[82:83], {v2(xr)}, {v2(wi)}")
        A(f"v_pk_fma_f32 v[80:81], {v2(xi)}, {v2(wi)}, v[80:81] neg_lo:[1,0,0] neg_hi:[1,0,0]\nv_pk_fma_f32 v[82:83], {v2(xi)}, {v2(wr)}, v[82:83]")
        A(f"v_cvt_pk_f16_f32 v{84+h}, v80, v81\nv_cvt_pk_f16_f32 v{86+h}, v82, v83")
    A("ds_write_b64 v114, v[84:85]\nds_write_b64 v114, v[86:87] offset:2048")
    A("s_mov_b32 s63, s62")
    A("s_waitcnt lgkmcnt(0)")
    A("s_barrier")
    mark("B", 3)
    for ks in range(2):
        A(f"ds_read_b128 {v4(16+4*ks)}, v115 offset:{ks*1024}\nds_read_b128 {v4(24+4*ks)}, v115 offset:{2048+ks*1024}")
    for ks in range(2):
        A(f"s_waitcnt lgkmcnt({2*(1-ks)})")
        for i in range(4): A(f"v_xor_b32 v{32+4*ks+i}, s49, v{24+4*ks+i}")
        A(f"v_mfma_f32_16x16x32_f16 v[72:75], {v4(16+4*ks)}, {v4(40+4*ks)}, {'0' if ks == 0 else 'v[72:75]'}")
        A(f"v_mfma_f32_16x16x32_f16 v[76:79], {v4(24+4*ks)}, {v4(40+4*ks)}, {'0' if ks == 0 else 'v[76:79]'}")
        A(f"v_mfma_f32_16x16x32_f16 v[72:75], {v4(32+4*ks)}, {v4(48+4*ks)}, v[72:75]")
        A(f"v_mfma_f32_16x16x32_f16 v[76:79], {v4(16+4*ks)}, {v4(48+4*ks)}, v[76:79]")
    pack_store(84, 72, 76, 116, 43)
    mark("B", 4)
    publish(1, 0, 8, full_pub(1))
    mark("top", 3); mark("B", 5)
    if PF2 == "W1": pf2()
    for u in range(NE): tr(u, VT0, u*1024)
    A("s_and_b32 s36, s2, 63\ns_lshr_b32 s37, s2, 6")
    A(f"v_lshlrev_b32 v6, 4, v0\ns_mov_b32 s40, {T_PER}")
    A("buffer_load_dwordx4 v[64:67], v6, s[16:19], s40 offen")
    A("v_mul_u32_u24 v4, 56, v2\nv_lshl_add_u32 v4, v3, 3, v4\nv_add_u32 v5, 32, v4")
    A("v_cmp_gt_u32 vcc, 48, v1")
    A(f"v_mov_b32 v12, {OOB:#x}\nv_mov_b32 v13, 0\nv_mov_b32 v14, 1.0")
    A("v_cndmask_b32 v5, v12, v5, vcc\nv_cndmask_b32 v63, v13, v14, vcc")
    A("s_lshl_b32 s46, s37, 9\ns_add_u32 s46, s46, s36")
    A("s_lshl_b32 s39, s38, 6\ns_add_u32 s39, s39, s46\ns_mul_i32 s39, s39, 896")
    A(f"s_add_u32 s48, s39, {WS_H:#x}")
    A("buffer_load_dwordx2 v[68:69], v4, s[12:15], s39 offen\nbuffer_load_dwordx2 v[70:71], v5, s[12:15], s39 offen")
    A("s_waitcnt lgkmcnt(0)")
    if SOLO: A("s_barrier")
    w1_batch(1, NE, NE)
    A("s_and_b32 s42, s38, 1\ns_lshl_b32 s43, s42, 7")
    A(f"s_lshl_b32 s44, s36, 15\ns_lshl_b32 s45, s38, 12\ns_add_u32 s44, s44, s45\ns_add_u32 s44, s44, {WS_TP:#x}")
    A("v_lshrrev_b32 v12, 2, v2\nv_and_b32 v13, 3, v2")
    A("v_lshlrev_b32 v12, 7, v12\nv_add_u32 v12, s46, v12\nv_cvt_f32_u32 v12, v12\nv_mul_f32 v12, 0x3a000000, v12\nv_add_f32 v14, 0x3d000000, v12")
    A("v_cvt_f32_u32 v15, v13\nv_and_b32 v16, 1, v13\nv_cvt_f32_u32 v16, v16")
    A("v_add_f32 v17, -2.0, v15\nv_mul_f32 v17, 0x3e800000, v17\nv_mul_f32 v17, v16, v17")
    A("v_sub_f32 v18, 1.0, v15\nv_mul_f32 v18, 0x3e800000, v18\nv_sub_f32 v16, 1.0, v16\nv_mul_f32 v18, v16, v18")
    A("s_and_b32 s49, s38, 3\ns_lshr_b32 s50, s38, 2\ns_lshl_b32 s50, s50, 4\ns_add_u32 s49, s49, s50")
    A("v_lshl_add_u32 v19, v3, 2, s49\nv_cvt_f32_u32 v19, v19")
    A("v_fma_f32 v20, v19, v12, v17\nv_fma_f32 v21, v19, v14, v18")
    A("v_cos_f32 v22, v20\nv_cos_f32 v23, v21\nv_sin_f32 v24, v20\nv_sin_f32 v25, v21")
    A("v_add_f32 v22, v22, v23\nv_add_f32 v24, v24, v25\nv_cvt_pk_f16_f32 v22, v22, -v24")
    A(f"s_lshl_b32 s49, s38, 1\ns_add_u32 s49, s49, {C_SM}\nv_add_u32 v23, s49, v7")
    A("ds_write_b16 v23, v22\nds_write_b16_d16_hi v23, v22 offset:1024")
    A("s_cmp_lg_u32 s38, 1\ns_cbranch_scc1 L_C_nz")
    A(f"v_mov_b32 v24, 0\nv_mov_b32 v25, 0\nv_mul_u32_u24 v26, {ZP}, v2\nv_mul_u32_u24 v27, {ZPB}, v3\nv_add_u32 v26, v26, v27")
    A(f"ds_write_b64 v26, v[24:25] offset:{C_ZF+120}")
    A("v_cmp_ne_u32 vcc, 0, v2\ns_mov_b64 exec, vcc")
    A(f"ds_write_b64 v26, v[24:25] offset:{C_ZF+112}")
    A("s_mov_b64 exec, -1")
    A("L_C_nz:")
    for f in range(12): A(f"ds_read_b128 {v4(80+4*f)}, v7 offset:{C_TBL + f*1024}")
    A("s_lshl_b32 s49, s42, 10\nv_add_u32 v29, s49, v7")
    A(f"ds_read_b128 v[76:79], v29 offset:{C_TBL + 12*1024}")
    A("v_xor_b32 v8, s43, v7\nv_xor_b32 v9, 32, v8\nv_xor_b32 v10, 64, v8\nv_xor_b32 v11, 0x60, v8")
    A("v_lshrrev_b32 v28, 2, v2\nv_lshl_add_u32 v28, v3, 2, v28")
    A("v_and_b32 v29, 7, v28\ns_lshl_b32 s49, s38, 2\nv_xor_b32 v29, s49, v29")
    A("v_lshlrev_b32 v28, 10, v28\nv_lshl_add_u32 v28, v29, 5, v28\nv_and_b32 v29, 3, v2\nv_lshl_add_u32 v24, v29, 3, v28")
    A("v_xor_b32 v25, 32, v24\nv_xor_b32 v26, 64, v24\nv_xor_b32 v27, 0x60, v24")
    A(f"v_mul_u32_u24 v28, {ZP}, v2\nv_lshl_add_u32 v28, v3, 4, v28\ns_lshr_b32 s49, s38, 1\ns_mul_i32 s49, s49, {ZPB}\ns_add_u32 s49, s49, {C_ZF}\nv_add_u32 v28, s49, v28")
    A(f"s_mul_i32 s49, s38, {HXP}\ns_add_u32 s49, s49, {C_HX}\nv_add_u32 v30, s49, v4")
    A(f"v_lshrrev_b32 v31, 2, v2\nv_mul_u32_u24 v31, {HXP}, v31\nv_lshl_add_u32 v31, v3, 5, v31\nv_and_b32 v12, 3, v2\nv_lshl_add_u32 v31, v12, 3, v31")
    A(f"s_lshl_b32 s49, s38, 7\ns_add_u32 s49, s49, {C_HX}\nv_add_u32 v31, s49, v31")
    A(f"s_lshr_b32 s49, s36, 1\ns_mul_i32 s49, s49, 7168\ns_and_b32 s50, s36, 1\ns_mul_i32 s50, s50, 3584\ns_add_u32 s49, s49, s50\ns_add_u32 s49, s49, {WS_HT:#x}")
    if SOLO:
        A("s_cmp_eq_u32 s38, 0\ns_cbranch_scc1 L_C_v0\ns_cmp_eq_u32 s38, 1\ns_cbranch_scc1 L_C_v1")
        A(f"s_waitcnt vmcnt({NE})\ns_branch L_C_v2\nL_C_v1:\ns_waitcnt vmcnt({2*NE})\ns_branch L_C_v2\nL_C_v0:\ns_waitcnt vmcnt(0)\nL_C_v2:")
    else: A(f"s_waitcnt vmcnt({NE})")
    A("v_and_b32 v72, 0xffff, v64\nv_lshrrev_b32 v73, 16, v64\nv_and_b32 v74, 0xffff, v65\nv_lshrrev_b32 v75, 16, v65")
    A("v_mul_lo_u32 v67, v67, s37\nv_add_u32 v66, v66, v67")
    X = 16
    for k in range(4): A(f"v_lshlrev_b32 v{X+2*k}, 16, v{68+k}\nv_and_b32 v{X+2*k+1}, s59, v{68+k}")
    A("s_mov_b32 m0, s45\ns_waitcnt lgkmcnt(0)")
    wait(1, full_wait(1), 64, tmp=56)
    mark("top", 4); mark("C", 1)
    for i in range(4): A(f"buffer_load_dwordx4 v{8+i}, s[20:23], s44 offen offset:{i*1024} lds")
    A(f"ds_read_b128 v[32:35], v7 offset:{C_SM}\nds_read_b128 v[36:39], v7 offset:{C_SM+1024}")
    A("s_waitcnt vmcnt(0)")
    A("s_barrier")
    mark("C", 2)
    for tau in range(2):
        for ri in range(2):
            for half in range(2):
                A(f"ds_read_b64_tr_b16 {v2(40+8*tau+4*ri+2*half)}, v{24+2*tau+ri} offset:{half*16384}")
    A("s_waitcnt lgkmcnt(4)")
    A("v_mfma_f32_16x16x32_f16 v[56:59], v[32:35], v[40:43], 0\nv_mfma_f32_16x16x32_f16 v[56:59], v[36:39], v[44:47], v[56:59]")
    A("s_waitcnt lgkmcnt(0)")
    A("v_mfma_f32_16x16x32_f16 v[8:11], v[32:35], v[48:51], 0\nv_mfma_f32_16x16x32_f16 v[8:11], v[36:39], v[52:55], v[8:11]")
    A("v_cvt_pk_f16_f32 v60, v56, v57\nv_cvt_pk_f16_f32 v61, v58, v59")
    A("ds_write_b32 v72, v60\nds_write_b32 v73, v61")
    A("v_cvt_pk_f16_f32 v62, v8, v9\nv_cvt_pk_f16_f32 v12, v10, v11")
    A("ds_write_b32 v74, v62\nds_write_b32 v75, v12")
    A("s_waitcnt lgkmcnt(0)")
    A("s_barrier")
    A("ds_read_b128 v[32:35], v28\nds_read_b128 v[36:39], v28 offset:64")
    if PF2 == "C": pf2()
    A(f"s_waitcnt lgkmcnt(0)")
    mark("C", 3)
    for ks in range(2):
        for dt in range(2):
            for ri in range(2):
                a = 40+8*dt+4*ri
                A(f"v_mfma_f32_16x16x32_f16 {v4(a)}, {v4(32+4*ks)}, {v4(80+4*(4*ks+2*dt+ri))}, {'0' if ks==0 else v4(a)}")
    for dt in range(2):
        for h in range(2):
            gr = 40+8*dt+2*h; gi = 44+8*dt+2*h; tc = 112+8*dt+2*h; ts = 116+8*dt+2*h
            A(f"v_pk_mul_f32 v[56:57], {v2(gr)}, {v2(tc)}\nv_pk_mul_f32 v[58:59], {v2(gr)}, {v2(ts)}")
            A(f"v_pk_fma_f32 v[56:57], {v2(gi)}, {v2(ts)}, v[56:57] neg_lo:[1,0,0] neg_hi:[1,0,0]\nv_pk_fma_f32 v[58:59], {v2(gi)}, {v2(tc)}, v[58:59]")
            for e in range(2): A(f"v_cvt_pk_f16_f32 v{32+4*dt+2*h+e}, v{56+e}, v{58+e}")
        A(f"v_mfma_f32_16x16x32_f16 {v4(80+4*dt)}, {v4(32+4*dt)}, v[76:79], 0")
    A("s_waitcnt lgkmcnt(0)")
    pend = []
    def spr(n):
        for _ in range(n):
            if pend:
                u = pend.pop(0); w_dma(True, u, VW1, f"s_add_u32 m0, s35, {(u-2*NE)*1024}")
    spr(2)
    Z = 80; PK = 68
    for k in range(4): A(f"v_pk_mul_f32 {v2(Z+2*k)}, {v2(Z+2*k)}, s[62:63]")
    bf_round_arr(A, Z, 8, PK)
    for k in range(4): A(f"v_pk_add_f32 {v2(X+2*k)}, {v2(X+2*k)}, {v2(Z+2*k)}")
    bf_round_arr(A, X, 8, PK)
    A(f"buffer_store_dwordx2 v[68:69], v4, s[20:23], s48 offen {WT}\nbuffer_store_dwordx2 v[70:71], v5, s[20:23], s48 offen {WT}")
    PK = 72
    R = dict(mu=88, m=90, ss=92, t0=89)
    for it in range(2):
        A(f"v_pk_add_f32 v[94:95], {v2(X)}, {v2(X+2)}\nv_pk_add_f32 v[96:97], {v2(X+4)}, {v2(X+6)}")
        A("v_add_f32 v94, v94, v95\nv_add_f32 v96, v96, v97\nv_fma_f32 v88, v96, v63, v94")
        spr(2)
        reduce_rows(A, [88], [89], full=True)
        A("v_mul_f32 v88, s60, v88")
        bf_round_scalar(A, 90, 88)
        for k in range(4): A(f"v_pk_add_f32 {v2(X+2*k)}, {v2(X+2*k)}, v[90:91] op_sel_hi:[1,0] neg_lo:[0,1] neg_hi:[0,1]")
        A(f"v_pk_mul_f32 v[94:95], {v2(X)}, {v2(X)}\nv_pk_mul_f32 v[96:97], {v2(X+4)}, {v2(X+4)}")
        A(f"v_pk_fma_f32 v[94:95], {v2(X+2)}, {v2(X+2)}, v[94:95]\nv_pk_fma_f32 v[96:97], {v2(X+6)}, {v2(X+6)}, v[96:97]")
        A("v_add_f32 v94, v94, v95\nv_add_f32 v96, v96, v97\nv_fma_f32 v92, v96, v63, v94")
        spr(2)
        red = Asm(); reduce_rows(red, [92], [89], full=True); ln_stats_tail(red, [R])
        rnd = Asm(); bf_round_arr(rnd, X, 8, PK)
        a, b_ = red.lines, rnd.lines
        while a or b_:
            if a: A(a.pop(0))
            if b_: A(b_.pop(0))
            if b_: A(b_.pop(0))
        for k in range(4): A(f"v_pk_mul_f32 {v2(X+2*k)}, {v2(X+2*k)}, v[92:93] op_sel_hi:[1,0]")
        if it == 0: bf_round_arr(A, X, 8, PK)
    assert not pend
    mark("C", 4)
    for k in range(4): A(f"v_cvt_pk_bf16_f32 v{72+k}, v{X+2*k}, v{X+2*k+1}")
    A("ds_write_b64 v30, v[72:73]\ns_mov_b32 exec_hi, 0xffff\nds_write_b64 v30, v[74:75] offset:32\ns_mov_b64 exec, -1")
    A("s_waitcnt lgkmcnt(0)")
    A("s_barrier")
    A("s_cmp_eq_u32 s38, 7\ns_cbranch_scc1 L_C_done")
    A(f"ds_read_b64_tr_b16 v[32:33], v31\nds_read_b64_tr_b16 v[34:35], v31 offset:{4*HXP}")
    A("s_waitcnt lgkmcnt(0)")
    A(f"buffer_store_dwordx4 v[32:35], v66, s[20:23], s49 offen {WT}")
    A("L_C_done:")
    mark("C", 5)
    publish(2, 0, 8, full_pub(2))
    mark("top", 5); mark("G", 1)
    for u in range(NE, 2*NE): tr(u, VT0, (u-NE)*1024)
    A("s_waitcnt lgkmcnt(0)")
    if SOLO: A("s_barrier")
    w1_batch(2, 2*NE, 32-2*NE)
    if PF2 == "G": pf2()
    w_voff(5, False, 8, 9)
    tr_lane(30, 8, 9)
    A("v_and_b32 v8, 7, v2\nv_lshlrev_b32 v8, 4, v8\nv_lshl_add_u32 v8, v3, 7, v8\nv_add_u32 v8, 3072, v8")
    A(f"s_mul_i32 s47, s{KQ}, 7168")
    for j in range(4):
        A(f"s_add_u32 s48, s{KQ}, {j}\ns_and_b32 s48, s48, 3\ns_lshl_b32 s49, s48, 10")
        A(f"v_add_u32 v{12+j}, s49, v7")
        A("s_cmp_eq_u32 s48, 3\ns_cselect_b64 vcc, -1, 0")
        A(f"v_cndmask_b32 v{12+j}, v{12+j}, v8, vcc")
        if j == 0: A("v_mov_b32 v24, v12")
        A(f"v_add_u32 v{12+j}, s47, v{12+j}\nv_add_u32 v{16+j}, {2*28672}, v{12+j}")
        if j > 0:
            A(f"s_lshl_b32 s49, s{MH}, 2\ns_add_u32 s49, s49, s48\ns_mul_i32 s49, s49, 6144\ns_add_u32 s49, s49, {F_RB + (j-1)*2048}")
            A(f"v_add_u32 v{24+j}, s49, v7")
    A(f"s_lshl_b32 s49, s{MH}, 2\ns_add_u32 s49, s49, s{KQ}\ns_mul_i32 s49, s49, 6144\ns_add_u32 s49, s49, {F_RB}\nv_add_u32 v28, s49, v7")
    A(f"s_mul_i32 s39, s38, 3584\ns_mul_i32 s40, s38, 6144\ns_add_u32 s40, s40, {F_RB}")
    srd_ptr(A, 52, 72)
    A(f"s_mul_i32 s32, s{KQ}, {28*65536}\ns_lshl_b32 s33, s{ST}, 7\ns_add_u32 s32, s32, s33\ns_lshl_b32 s33, s{MH}, 6\ns_add_u32 s32, s32, s33\ns_add_u32 s33, s32, 65536")
    A(f"v_mov_b32 v20, v{VT0}\nv_mov_b32 v21, v{VT0+1}")
    A("s_waitcnt vmcnt(0)")
    if SOLO: A("s_barrier")
    for u in range(2*NE, 32): tr(u, 20, (u-2*NE)*1024)
    A("s_waitcnt lgkmcnt(0)")
    A(f"v_add_u32 v20, s39, v30\nv_add_u32 v21, s39, v31\nv_add_u32 v22, {2*28672}, v20\nv_add_u32 v23, {2*28672}, v21\nv_add_u32 v10, s40, v30\nv_add_u32 v11, s40, v31")
    def eslot(k): return (20 + 2*((k//3)//2), ((k//3) % 2)*28672 + (k % 3)*1024)
    def w2(u, k): w_dma(False, u, 5, f"s_add_u32 m0, s39, {(k//3)*28672 + (k % 3)*1024}")
    def w2t(u, k):
        va, off = eslot(k); tr(u, va, off)
    A(f"s_cmp_lt_u32 s{NN}, 28\ns_cbranch_scc1 L_g1")
    A("s_barrier")
    for u in range(12): w2(u, u)
    A("s_waitcnt vmcnt(6)")
    for u in range(6): w2t(u, u)
    A("s_waitcnt lgkmcnt(0)")
    for u in range(12, 18): w2(u, u-12)
    A("s_waitcnt vmcnt(6)")
    for u in range(6, 12): w2t(u, u)
    A("s_waitcnt lgkmcnt(0)")
    for u in range(18, 24): w2(u, u-12)
    A("s_branch L_g2")
    A("L_g1:")

    def main(g1, pre):
        R = 8 if g1 else 7; NS = 4*R
        q = []
        def tpiece(i, n):
            if n == 0: A(f"s_add_u32 m0, s51, {(i % NRS)*28672}")
            if n == 3: A("s_mov_b32 exec_hi, 0")
            A(f"buffer_load_dwordx4 v7, s[20:23], s48 offen offset:{n*1024} lds")
            if n == 3:
                A("s_mov_b32 exec_hi, -1\ns_add_u32 s48, s48, 7168")
        def tdma(i):
            for n in range(4): tpiece(i, n)
            q.append((("T", i), 4))
        def younger(i):
            k = [x for x, _ in q].index(("T", i))
            return sum(n for _, n in q[k+1:])
        tdma(0); tdma(1)
        q.append((("X", 0), pre()))
        tdma(2)
        issued = 3
        def rd(i, ks):
            sl = i % NRS
            base = 12 + 4*(sl // 2); off = (sl % 2)*28672
            for j in range(4): A(f"ds_read_b128 {v4(32+16*ks+4*j)}, v{base+j} offset:{off + 3584*ks}")
        def mf(i, ks, j):
            kl = 2*i + ks
            for mt in range(2):
                a = v4(96+16*mt+4*j); w = v4(128+8*kl+4*mt); t = v4(32+16*ks+4*j)
                c = "0" if kl == 0 else a
                if g1: A(f"v_mfma_f32_16x16x32_bf16 {a}, {w}, {t}, {c}")
                else:  A(f"v_mfma_f32_16x16x32_bf16 {a}, {t}, {w}, {c}")
        A(f"s_waitcnt vmcnt({younger(0)})")
        A("s_barrier")
        rd(0, 0)
        carry = []
        for i in range(R):
            rd(i, 1)
            A("s_waitcnt lgkmcnt(4)")
            for j in range(4):
                mf(i, 0, j)
                if carry and j % 2 == 0: carry.pop(0)()
            if i < R - 1:
                A(f"s_waitcnt vmcnt({younger(i+1)})")
                A("s_barrier")
                rd(i+1, 0)
                A("s_waitcnt lgkmcnt(4)")
                ops = []
                if issued < R:
                    ops = [(lambda ii=issued, n=n: tpiece(ii, n)) for n in range(4)]
                    q.append((("T", issued), 4)); issued += 1
                elif g1 and i >= R - 3:
                    k0 = 3*(i - (R - 3))
                    ops = [(lambda u=u: w2(u, u)) for u in range(k0, k0+3)]
                    q.append((("X", i), 3))
                for j in range(4):
                    mf(i, 1, j)
                    if ops and j % 2 == 0: ops.pop(0)()
                carry = ops
            else:
                A("s_waitcnt lgkmcnt(0)")
                for j in (1, 2, 3, 0): mf(i, 1, j)
                for j in range(1, 4):
                    for mt in range(2): A(f"ds_write_b128 v{24+j}, {v4(96+16*mt+4*j)} offset:{mt*1024}")
        A("s_waitcnt lgkmcnt(0)")
        A("s_barrier")
        for j in range(3):
            for mt in range(2): A(f"ds_read_b128 {v4(32+8*j+4*mt)}, v28 offset:{j*2048+mt*1024}")
        if g1:
            for u in range(6, 12): w2(u, u)
        for j in range(3):
            A(f"s_waitcnt lgkmcnt({4-2*j})")
            for mt in range(2):
                for h in range(2):
                    src = v2(96+16*mt+2*h) if j == 0 else v2(64+4*mt+2*h)
                    A(f"v_pk_add_f32 {v2(64+4*mt+2*h)}, {src}, {v2(32+8*j+4*mt+2*h)}")
    def tsetup(g1):
        R = 8 if g1 else 7; NS = 4*R; TOFF = WS_HT if g1 else WS_UT
        A(f"s_mul_i32 s48, s{DT}, {NS}\ns_mul_i32 s49, s{KQ}, {R}\ns_add_u32 s48, s48, s49\ns_mul_i32 s48, s48, 7168\ns_mul_i32 s49, s{MH}, 3584\ns_add_u32 s48, s48, s49\ns_add_u32 s48, s48, {TOFF:#x}")
        A(f"s_mul_i32 s51, s{KQ}, 7168\ns_add_u32 s51, s51, s49")
    srd_pre(A, 12, F*2); srd_ptr(A, 12, 70)
    A(f"s_lshl_b32 s41, s{FT}, 7\ns_lshl_b32 s42, s{MH}, 6\ns_add_u32 s41, s41, s42\nv_lshlrev_b32 v8, 3, v3")
    A("buffer_load_dwordx2 v[88:89], v8, s[12:15], s41 offen\nbuffer_load_dwordx2 v[90:91], v8, s[12:15], s41 offen offset:32")
    c1 = -2.0*0.7978845608028654*1.4426950408889634
    A(f"s_mov_b32 s41, {fbits(c1):#x}\ns_mov_b32 s44, {fbits(c1*0.044715):#x}\ns_mov_b32 s45, s44\nv_mov_b32 v92, s41\nv_mov_b32 v93, s41")
    A(f"s_cmp_eq_u32 s{KQ}, 3\ns_cselect_b32 s41, 8, 16")
    A("v_cmp_gt_u32 vcc, s41, v2")
    A(f"v_mov_b32 v8, {OOB:#x}\nv_cndmask_b32 v24, v8, v24, vcc")
    A(f"s_mul_i32 s41, s{DT}, 28\ns_add_u32 s41, s41, s{FT}\ns_mul_i32 s41, s41, 7168\ns_mul_i32 s42, s{MH}, 3584\ns_add_u32 s41, s41, s42\ns_add_u32 s41, s41, {WS_UT:#x}")
    tsetup(True)
    A("s_waitcnt vmcnt(0)")
    for k in range(4): A(f"v_lshlrev_b32 v{80+2*k}, 16, v{88+k}\nv_and_b32 v{81+2*k}, s59, v{88+k}")
    wait(2, full_wait(2), 64)
    mark("G", 2)
    main(True, lambda: 0)
    mark("G", 3)
    bf_round_arr(A, 64, 8, 72)
    for k in range(4): A(f"v_pk_add_f32 {v2(64+2*k)}, {v2(64+2*k)}, {v2(80+2*k)}")
    A("s_waitcnt vmcnt(6)")
    for u in range(6): w2t(u, u)
    bf_round_arr(A, 64, 8, 72)
    for k in range(4): A(f"v_pk_mul_f32 {v2(80+2*k)}, {v2(64+2*k)}, {v2(64+2*k)}")
    for k in range(4): A(f"v_pk_fma_f32 {v2(80+2*k)}, {v2(80+2*k)}, s[44:45], v[92:93]")
    for k in range(4): A(f"v_pk_mul_f32 {v2(80+2*k)}, {v2(80+2*k)}, {v2(64+2*k)}")
    for k in range(8): A(f"v_exp_f32 v{80+k}, v{80+k}")
    for k in range(8): A(f"v_add_f32 v{80+k}, 1.0, v{80+k}")
    for k in range(8): A(f"v_rcp_f32 v{80+k}, v{80+k}")
    for k in range(4): A(f"v_pk_mul_f32 {v2(64+2*k)}, {v2(64+2*k)}, {v2(80+2*k)}")
    for k in range(4): A(f"v_cvt_pk_bf16_f32 v{72+k}, v{64+2*k}, v{65+2*k}")
    A(f"buffer_store_dwordx4 v[72:75], v24, s[20:23], s41 offen {WT}")
    A("s_waitcnt lgkmcnt(0)")
    for u in range(12, 18): w2(u, u-12)
    publish(3, 6, 4, f"s_lshl_b32 s47, s{DT}, 7\ns_lshl_b32 s41, s{FT}, 2\ns_add_u32 s47, s47, s41\ns_add_u32 s47, s47, {WS_FL[3]:#x}")
    mark("G", 4)
    for u in range(6, 12): w2t(u, u)
    A("s_waitcnt lgkmcnt(0)")
    for u in range(18, 24): w2(u, u-12)
    A("L_g2:")
    for u in range(24, 28): w_dma(False, u, 5, f"s_add_u32 m0, s40, {(u-24)*1024}")
    srd_pre(A, 12, S*2); srd_ptr(A, 12, 74)
    srd_pre(A, 16, S*D*2); srd_ptr(A, 16, 64)
    A(f"s_lshl_b32 s41, s{ST}, 7\ns_lshl_b32 s42, s{MH}, 6\ns_add_u32 s41, s41, s42\nv_lshlrev_b32 v8, 1, v2")
    A("buffer_load_ushort v88, v8, s[12:15], s41 offen\nbuffer_load_ushort v89, v8, s[12:15], s41 offen offset:32")
    A("v_mul_u32_u24 v29, 896, v2\nv_lshl_add_u32 v29, v3, 3, v29")
    A(f"s_cmp_eq_u32 s{KQ}, 3\ns_cselect_b32 s41, 32, 64")
    A("v_cmp_gt_u32 vcc, s41, v1")
    A(f"v_mov_b32 v8, {OOB:#x}\nv_cndmask_b32 v29, v8, v29, vcc")
    A(f"s_lshl_b32 s44, s{ST}, 6\ns_lshl_b32 s41, s{MH}, 5\ns_add_u32 s44, s44, s41\ns_mul_i32 s44, s44, 896")
    A(f"s_mul_i32 s41, s{DT}, 112\ns_add_u32 s44, s44, s41\ns_lshl_b32 s41, s{KQ}, 5\ns_add_u32 s44, s44, s41\ns_add_u32 s45, s44, 14336")
    A(f"s_add_u32 s41, s44, {WS_H:#x}\ns_add_u32 s42, s45, {WS_H:#x}")
    tsetup(False)
    A("s_waitcnt vmcnt(12)")
    for u in range(12, 18): w2t(u, u-12)
    A("s_waitcnt vmcnt(6)")
    for u in range(18, 24): w2t(u, u-12)
    A("s_waitcnt vmcnt(0)")
    for u in range(24, 28): tr(u, 10, (u-24)*1024)
    A("v_lshlrev_b32 v76, 16, v88\nv_lshlrev_b32 v78, 16, v89")
    A("s_waitcnt lgkmcnt(0)")
    wait(3, f"s_lshl_b32 s47, s{XQ}, 10\ns_lshl_b32 s34, s{DT}, 7\ns_add_u32 s47, s47, s34\ns_add_u32 s47, s47, {WS_FL[3]:#x}", 7)
    mark("G", 5)
    def pre2():
        A("buffer_load_dwordx2 v[92:93], v29, s[20:23], s41 offen\nbuffer_load_dwordx2 v[94:95], v29, s[20:23], s42 offen")
        return 2
    main(False, pre2)
    for k in range(4): A(f"v_lshlrev_b32 v{80+2*k}, 16, v{92+k}\nv_and_b32 v{81+2*k}, s59, v{92+k}")
    bf_round_arr(A, 64, 8, 72)
    for k in range(4): A(f"v_pk_add_f32 {v2(64+2*k)}, {v2(64+2*k)}, {v2(76+2*(k>>1))} op_sel_hi:[1,0]")
    bf_round_arr(A, 64, 8, 72)
    for k in range(4): A(f"v_pk_add_f32 {v2(64+2*k)}, {v2(64+2*k)}, {v2(80+2*k)}")
    for k in range(4): A(f"v_cvt_pk_bf16_f32 v{72+k}, v{64+2*k}, v{65+2*k}")
    A("buffer_store_dwordx2 v[72:73], v29, s[16:19], s44 offen\nbuffer_store_dwordx2 v[74:75], v29, s[16:19], s45 offen")
    if STAMP:
        A("s_memtime s[88:89]\ns_waitcnt vmcnt(0) lgkmcnt(0)")
        A("s_memrealtime s[100:101]\ns_memtime s[90:91]\ns_waitcnt lgkmcnt(0)")
        A(f"s_add_u32 s92, s10, {WS_STAMP:#x}\ns_addc_u32 s93, s11, 0\ns_and_b32 s93, s93, 0xffff\ns_mov_b32 s94, 0x40000\ns_mov_b32 s95, 0x20000")
        A("s_mov_b64 exec, 1")
        A("s_lshl_b32 s96, s2, 10\ns_lshl_b32 s97, s38, 6\ns_add_u32 s96, s96, s97\nv_mov_b32 v15, 0\nv_mov_b32 v2, s98\nv_mov_b32 v3, s100")
        for i in range(8): A(f"v_mov_b32 v{4+i}, s{76+2*i}")
        A("buffer_store_dwordx2 v[2:3], v15, s[92:95], s96 offen\nbuffer_store_dwordx4 v[4:7], v15, s[92:95], s96 offen offset:16\nbuffer_store_dwordx4 v[8:11], v15, s[92:95], s96 offen offset:32")
    A("L_end2:\ns_endpgm")
    return A.finalize()

def main(out):
    code = build()
    hdr = open("sequential_preLN__spectral_gfnet__mixer_token_mlp__prompt.s.ref").read().split("\n")
    hdr = [l for l in hdr if l.startswith(";") and "@launch" not in l and "Override" not in l and "grid=ceil" not in l]
    L = "\n".join(hdr) + "\n"
    if os.environ.get("ASLIST"): L += f"; @launch kernel={NAME} grid=(256,1,1) block=(512,1,1) lds={F_LDS}\n"
    else: L += f"; @launch grid=(256,1,1) block=(512,1,1) lds={F_LDS}\n"
    L += '.amdgcn_target "amdgcn-amd-amdhsa--gfx950"\n.text\n' + code
    L += f""".section .rodata,"a"
.p2align 6
.amdhsa_kernel {NAME}
  .amdhsa_next_free_vgpr 256
  .amdhsa_next_free_sgpr 102
  .amdhsa_accum_offset 256
  .amdhsa_group_segment_fixed_size 0
  .amdhsa_kernarg_size 88
  .amdhsa_user_sgpr_count 2
  .amdhsa_user_sgpr_kernarg_segment_ptr 1
  .amdhsa_system_sgpr_workgroup_id_x 1
  .amdhsa_float_denorm_mode_32 3
  .amdhsa_float_denorm_mode_16_64 3
.end_amdhsa_kernel
"""
    L += emit_table("tbl", tables())
    open(out, "w").write(L)
    print("wrote", out, len(L), "bytes")

if __name__ == "__main__":
    if len(sys.argv) > 2 and sys.argv[2] == "stamp": STAMP = True
    main(sys.argv[1])
```
